```python
import torch

def _softmax(x, axis=-1):
    return torch.softmax(x, dim=axis)
def _gelu(x):
    return torch.nn.functional.gelu(x, approximate="tanh")
def _silu(x):
    return torch.nn.functional.silu(x)
def _sigmoid(x):
    return torch.sigmoid(x)
def _layernorm(x, axis=-1, eps=1e-5):
    m = x.mean(dim=axis, keepdim=True)
    v = x.var(dim=axis, keepdim=True, unbiased=False)
    return (x - m) / torch.sqrt(v + eps)
def _scatter_add(tgt, idx, src, axis=0):
    return tgt.clone().index_add_(axis, idx, src)
def _segment_sum(src, seg, n):
    out = torch.zeros((n,) + src.shape[1:], dtype=src.dtype)
    return out.index_add_(0, seg, src)
def _pad(x, pw):
    flat = tuple(v for pair in reversed(pw) for v in pair)
    return torch.nn.functional.pad(x, flat)

kernel_name = 'recurrent_scan__ssm_conv_h3__dense_activation_squared_relu__prompt'

def setup_inputs():

    _w = (lambda a: (lambda t: t.to(torch.bfloat16) if t.is_floating_point() else t)(torch.as_tensor(a)))
    def _A_setup():
        B, S, D = 1, 2048, 448
        ks = 4
        return {
            "q": _w((lambda *s: torch.randn(*s, dtype=torch.bfloat16) * 0.05)(B, S, D)),
            "k": _w((lambda *s: torch.randn(*s, dtype=torch.bfloat16) * 0.2)(B, S, D)),
            "v": _w((lambda *s: torch.randn(*s, dtype=torch.bfloat16) * 0.2)(B, S, D)),
            "shift_k": _w((lambda *s: torch.randn(*s, dtype=torch.bfloat16) * 0.2)(D, ks) * 0.5),
            "ssm_k": _w((lambda *s: torch.randn(*s, dtype=torch.bfloat16) * 0.2)(D, S) * (1.0 / S ** 0.5)),
            "ssm_D": _w((lambda *s: torch.randn(*s, dtype=torch.bfloat16) * 0.2)(D)),
        }
    _A_in = _A_setup()

    def _B_setup():
        B, S, D, F = 1, 2048, 448, 1792
        return {
            "x": _w((lambda *s: torch.randn(*s, dtype=torch.bfloat16) * 0.05)(B, S, D)),
            "w1": _w((lambda *s: torch.randn(*s, dtype=torch.bfloat16) * 0.1)(D, F)),
            "b1": _w((lambda *s: torch.randn(*s, dtype=torch.bfloat16) * 0.4)(F)),
            "w2": _w((lambda *s: torch.randn(*s, dtype=torch.bfloat16) * 0.1)(F, D)),
            "b2": _w((lambda *s: torch.randn(*s, dtype=torch.bfloat16) * 12.8)(D)),
        }
    _B_in = _B_setup()

    return {
        "A_q": _A_in["q"],
        "A_k": _A_in["k"],
        "A_v": _A_in["v"],
        "A_shift_k": _A_in["shift_k"],
        "A_ssm_k": _A_in["ssm_k"],
        "A_ssm_D": _A_in["ssm_D"],
        "B_x": _B_in["x"],
        "B_w1": _B_in["w1"],
        "B_b1": _B_in["b1"],
        "B_w2": _B_in["w2"],
        "B_b2": _B_in["b2"],
    }

def reference(A_q, A_k, A_v, A_shift_k, A_ssm_k, A_ssm_D, B_x, B_w1, B_b1, B_w2, B_b2):
    def _A_ref(q, k, v, shift_k, ssm_k, ssm_D):
        B, S, D = q.shape
        ks = shift_k.shape[-1]
        k_pad = _pad(k, ((0, 0), (ks - 1, 0), (0, 0)))
        k_shift = torch.zeros_like(k)
        for t in range(ks):
            k_shift = k_shift + k_pad[:, t:t + S, :] * shift_k[:, ks - 1 - t][None, None, :]
        kv = k_shift * v
        L = 2 * S
        kv_pad = _pad(kv, ((0, 0), (0, S), (0, 0)))
        kf_pad = _pad(ssm_k, ((0, 0), (0, S)))
        kv_f = (lambda x, axes=(-2,-1): torch.fft.rfft2(x.float(), dim=axes))(kv_pad[:, None, :, :], axes=(1, 2))
        kf_f = (lambda x, axes=(-2,-1): torch.fft.rfft2(x.float(), dim=axes))(kf_pad[:, None, :], axes=(1, 2))
        kf_f = (lambda x, *d: x.permute(*d))(kf_f, 1, 2, 0)
        y_f = kv_f * kf_f[None, :, :, :]
        y = (lambda x, s, axes=(-2,-1): torch.fft.irfft2(x, s=s, dim=axes).to(torch.bfloat16))(y_f, (1, L), axes=(1, 2))[:, 0, :S, :]
        y = y + kv * ssm_D[None, None, :]
        return q * y

    def _B_ref(x, w1, b1, w2, b2):
        h = torch.einsum("bsd,df->bsf", x, w1) + b1
        zero = torch.zeros_like(h)
        r = torch.where(h > zero, h, zero)
        h = r * r
        out = torch.einsum("bsf,fd->bsd", h, w2) + b2
        return out

    x = A_q
    xn = _layernorm(x, axis=-1)
    s = _A_ref(xn, A_k, A_v, A_shift_k, A_ssm_k, A_ssm_D)
    g = _silu(_B_ref(xn, B_w1, B_b1, B_w2, B_b2))
    return x + s * g
```

```python
import sys

opts = dict(a.split("=") for a in sys.argv[2:])
TS = int(opts.get("ts", "0"))
KNAME = "recurrent_scan__ssm_conv_h3__dense_activation_squared_relu__prompt_kernel"

WS_KVF = 0x0000
WS_YF = 0x0400
WS_HF = 0x2000
WS_STAT = 0x4000
WS_TS = 0x20000
WS_KVT = 0x100000
WS_YT = 0x300000
WS_H = 0x500000
WS_SIZE = 0x10000000

NWG = 224
LDS_BYTES = 163840
RING = 0
CB = 131072
KVS = CB
AUGX = CB + 20480
AUGW = CB + 21504
KVL = CB
HL = CB + 8448
YL0 = HL
YL1 = CB + 17152
CARRY = CB + 25344
YT_L = CB + 26624

L = []
def A(s): L.append("    " + s)
def LB(s): L.append(s + ":")
def C(s): L.append("    ; " + s)

class Q:
    def __init__(self, name, maxn):
        self.q = []; self.name = name; self.maxn = maxn
    def push(self, tag): self.q.append(tag)
    def n_after(self, tag):
        idx = max(i for i, t in enumerate(self.q) if t == tag)
        return len(self.q) - 1 - idx
    def wait(self, tag):
        if tag not in self.q: return
        n = self.n_after(tag)
        n = min(n, self.maxn)
        A(f"s_waitcnt {self.name}({n})")
        self.q = self.q[len(self.q) - n:] if n else []
    def waitall(self):
        A(f"s_waitcnt {self.name}(0)"); self.q = []
    def set(self, lst): self.q = list(lst)
VM = Q("vmcnt", 63)
LG = Q("lgkmcnt", 15)
def vm(s, tag): A(s); VM.push(tag)
def lg(s, tag): A(s); LG.push(tag)

sWAVE = 3
SX, SW1, SW2, SWS, SK, SV, SH, SOUT, SDBG = 44, 48, 52, 56, 60, 64, 68, 72, 76
pSHK, pD, pB1, pB2 = 16, 18, 20, 22
sR, sC, sR2, sC2, sJ = 6, 7, 8, 9, 10
sWR, sWC = 11, 12
sXOFF, sW1OFF, sW2OFF = 13, 14, 15
sT0, sT1, sT2, sT3 = 24, 25, 26, 27
sCNT, sDELTA, sM0X, sTOK, sONES = 28, 29, 30, 31, 32
sW2M0 = 33
sHOFF0, sHOFF1 = 34, 35
sLO32 = 36
sTMP64 = 38
sDVAL = 40
sTS0 = 80
def srd(r): return f"s[{r}:{r+3}]"

vTID, vLANE, vL16 = 0, 1, 2
vDX = 4
vDW1 = 8
vDR = 12
vRX = 16
vRW = 24
vSUM, vSQ, vCS = 26, 27, 28
vTOK, vB1, vT0 = 29, 30, 31
ACC = 32
FA, FB = 96, 112
vZ = 128
TMP = 132
def v(r, n=1): return f"v{r}" if n == 1 else f"v[{r}:{r+n-1}]"
def a(r, n=1): return f"a{r}" if n == 1 else f"a[{r}:{r+n-1}]"

ts_n = [0]
ts_all = [0]
TS_SEL = [int(x) for x in opts.get("tsel", "0,2,4,5,7,8,9,10,11,12,14").split(",")]
def stamp():
    if TS and ts_all[0] in TS_SEL:
        r = sTS0 + 2 * ts_n[0]
        assert r + 1 <= 101
        A(f"s_memrealtime s[{r}:{r+1}]")
        ts_n[0] += 1
    ts_all[0] += 1
sSPIN = 41
def spin_guard(ok):
    A(f"s_cmp_eq_u32 s{sSPIN}, 0")
    A(f"s_cbranch_scc1 {ok}")
    A(f"s_sub_u32 s{sSPIN}, s{sSPIN}, 1")

hdr = open("recurrent_scan__ssm_conv_h3__dense_activation_squared_relu__prompt.s.ref").read().split("\n")
for line in hdr:
    if line.startswith("; @launch"):
        L.append(f"; @launch grid=({NWG},1,1) block=(256,1,1) lds={LDS_BYTES}")
    elif line.startswith(";"):
        L.append(line)
    else:
        break
L.append(f""".amdgcn_target "amdgcn-amd-amdhsa--gfx950"
.text
.globl {KNAME}
.p2align 8
.type {KNAME},@function
{KNAME}:""")

for reg, off in ((SK, 8), (SV, 16), (SX, 0), (SW1, 56), (pSHK, 24), (SDBG, 96), (SWS, 104)):
    A(f"s_load_dwordx2 s[{reg}:{reg+1}], s[0:1], {off}")
A(f"s_memrealtime s[{sTMP64}:{sTMP64+1}]")
stamp()
A(f"s_cmp_ge_u32 s2, {NWG}")
A("s_cbranch_scc1 L_end")
A("s_getpc_b64 s[4:5]")
A(f"v_lshlrev_b32 v3, 6, v0")
vm("global_load_dword v31, v3, s[4:5]", "pf")
A(f"v_and_b32 v{vLANE}, 63, v0")
A("v_lshrrev_b32 v3, 6, v0")
A(f"v_lshlrev_b32 v{vL16}, 4, v{vLANE}")
A(f"v_readfirstlane_b32 s{sWAVE}, v3")
A("s_and_b32 s24, s2, 7")
A("s_lshr_b32 s25, s2, 3")
A("s_mul_i32 s26, s25, 37")
A("s_lshr_b32 s26, s26, 8")
A("s_mul_i32 s27, s26, 7")
A(f"s_sub_u32 s{sC2}, s25, s27")
A("s_lshl_b32 s27, s24, 2")
A(f"s_add_u32 s{sR2}, s27, s26")
A("s_lshr_b32 s27, s24, 1")
A("s_lshl_b32 s27, s27, 2")
A(f"s_add_u32 s{sR}, s27, s26")
A("s_and_b32 s27, s24, 1")
A("s_mul_i32 s27, s27, 7")
A(f"s_add_u32 s{sC}, s27, s{sC2}")
for r_, sz in ((SK, 1835008), (SV, 1835008), (SX, 1835008), (SW1, 1605632), (SDBG, 256), (SWS, WS_SIZE)):
    A(f"s_mov_b32 s{r_+2}, {sz}")
    A(f"s_mov_b32 s{r_+3}, 0x20000")
A(f"v_lshrrev_b32 v3, 3, v{vLANE}")
A(f"v_mul_u32_u24 v{TMP}, 896, v3")
A(f"v_and_b32 v{TMP+1}, 7, v{vLANE}")
A(f"v_lshrrev_b32 v{TMP+2}, 1, v3")
A(f"v_xor_b32 v{TMP+3}, v{TMP+1}, v{TMP+2}")
A(f"v_lshl_add_u32 v{vDX}, v{TMP+3}, 4, v{TMP}")
A(f"v_and_b32 v{TMP+2}, 1, v{TMP+2}")
A(f"v_lshlrev_b32 v{TMP+2}, 2, v{TMP+2}")
A(f"v_xor_b32 v{TMP+3}, v{TMP+1}, v{TMP+2}")
A(f"v_lshl_add_u32 v{vDR}, v{TMP+3}, 4, v{TMP}")
A(f"v_add_u32 v{vDR+1}, 6144, v{vDR}")
A(f"s_lshl_b32 s24, s{sR2}, 2")
A(f"s_add_u32 s24, s24, s{sWAVE}")
A("s_mul_i32 s25, s24, 14336")
A(f"s_lshl_b32 s26, s{sC2}, 7")
A("s_add_u32 s25, s25, s26")
A("s_sub_u32 s26, s25, 7168")
A("s_cmp_eq_u32 s24, 0")
A("s_cselect_b32 s26, 0x7fff0000, s26")
A(f"s_mul_i32 s27, s{sWAVE}, 5120")
A(f"s_add_u32 s27, s27, {KVS}")
A(f"v_lshlrev_b32 v3, 3, v{vLANE}")
A("s_waitcnt lgkmcnt(0)")
A(f"s_or_b32 s4, s2, s{sWAVE}")
A("s_cmp_lg_u32 s4, 0")
A("s_cbranch_scc1 L_notok")
A(f"s_or_b32 s4, s{sTMP64}, 1")
A(f"v_mov_b32 v{TMP}, s4")
A(f"v_mov_b32 v{TMP+1}, 0")
A(f"buffer_store_dword v{TMP}, v{TMP+1}, {srd(SDBG)}, 0 offen sc1")
LB("L_notok")
A("s_mov_b32 m0, s27")
A(f"s_lshl_b32 s4, s{sC2}, 9")
vm(f"buffer_load_dwordx4 v{vDR}, {srd(SK)}, s26 offen lds", "kv")
A("s_add_u32 m0, s27, 1024")
A(f"v_add_u32 v3, s4, v3")
vm(f"buffer_load_dwordx4 v{vDR}, {srd(SK)}, s25 offen lds", "kv")
vm(f"buffer_load_dwordx4 v{vDR+1}, {srd(SK)}, s25 offen offset:1024 lds", "kv")
A("s_add_u32 m0, s27, 3072")
vm(f"global_load_dwordx2 v[{TMP+4}:{TMP+5}], v3, s[{pSHK}:{pSHK+1}]", "kv")
vm(f"buffer_load_dwordx4 v{vDR}, {srd(SV)}, s25 offen lds", "kv")
vm(f"buffer_load_dwordx4 v{vDR+1}, {srd(SV)}, s25 offen offset:1024 lds", "kv")
A(f"v_xor_b32 v{vDX+1}, 64, v{vDX}")
A(f"v_add_u32 v{vDX+1}, 6144, v{vDX+1}")
A(f"v_add_u32 v{vDX+2}, 12288, v{vDX}")
A(f"v_add_u32 v{vDX+3}, 12288, v{vDX+1}")
A(f"v_lshrrev_b32 v3, 4, v{vLANE}")
A(f"v_mul_u32_u24 v{TMP}, 3584, v3")
A(f"v_and_b32 v{TMP+1}, 15, v{vLANE}")
A(f"v_lshlrev_b32 v{TMP+2}, 2, v3")
A(f"v_xor_b32 v{TMP+1}, v{TMP+1}, v{TMP+2}")
A(f"v_lshl_add_u32 v{vDW1}, v{TMP+1}, 4, v{TMP}")
for g in range(1, 4):
    A(f"v_add_u32 v{vDW1+g}, {13312*g}, v{vDW1}")
A(f"s_lshl_b32 s24, s{sR}, 2")
A(f"s_add_u32 s24, s24, s{sWAVE}")
A(f"s_mul_i32 s{sXOFF}, s24, 28672")
A(f"s_mul_i32 s{sW1OFF}, s{sWAVE}, 57344")
A(f"s_lshl_b32 s24, s{sC}, 8")
A(f"s_add_u32 s{sW1OFF}, s{sW1OFF}, s24")
A(f"s_lshl_b32 s{sM0X}, s{sWAVE}, 12")

def issue_g1_chunk():
    A(f"s_mov_b32 m0, s{sM0X}")
    A(f"s_add_u32 s24, s{sM0X}, 16384")
    for g in range(4):
        vm(f"buffer_load_dwordx4 v{vDX+g}, {srd(SX)}, s{sXOFF} offen offset:{1024*g} lds", "g1")
    A("s_mov_b32 m0, s24")
    A(f"s_add_u32 s{sXOFF}, s{sXOFF}, 128")
    for g in range(4):
        vm(f"buffer_load_dwordx4 v{vDW1+g}, {srd(SW1)}, s{sW1OFF} offen offset:{1024*g} lds", "g1")
    A(f"s_add_u32 s{sW1OFF}, s{sW1OFF}, {64*3584}")

A(f"s_mov_b32 s{sCNT}, 0")
LB("L_pre")
save = list(VM.q)
issue_g1_chunk()
A(f"s_add_u32 s{sM0X}, s{sM0X}, 32768")
A(f"s_add_u32 s{sCNT}, s{sCNT}, 1")
A(f"s_cmp_lt_u32 s{sCNT}, 4")
A("s_cbranch_scc1 L_pre")
VM.set(save + ["c0"] * 8 + ["c1"] * 8 + ["c2"] * 8 + ["c3"] * 8)
A(f"s_sub_u32 s{sM0X}, s{sM0X}, 131072")
stamp()
for reg, off in ((SW2, 72), (SH, 32), (pD, 40), (pB1, 64), (pB2, 80), (SOUT, 88)):
    A(f"s_load_dwordx2 s[{reg}:{reg+1}], s[0:1], {off}")
for r_, sz in ((SW2, 1605632), (SH, 1835008), (SOUT, 1835008)):
    A(f"s_mov_b32 s{r_+2}, {sz}")
    A(f"s_mov_b32 s{r_+3}, 0x20000")
A(f"v_add_u32 v{vDR+2}, 12288, v{vDR}")
A(f"v_add_u32 v{vDR+3}, 18432, v{vDR}")
A(f"s_lshr_b32 s{sWR}, s{sWAVE}, 1")
A(f"s_and_b32 s{sWC}, s{sWAVE}, 1")
A(f"s_mov_b32 s{sONES}, 0x3f803f80")
A(f"s_mov_b32 s{sSPIN}, 200000")
A(f"s_mov_b32 s{sLO32}, -1")
A(f"s_mov_b32 s{sLO32+1}, 0")
vG, vr, vq = TMP + 8, TMP + 9, TMP + 10
A(f"v_lshrrev_b32 v{vG}, 4, v{vLANE}")
A(f"v_bfe_u32 v{vr}, v{vLANE}, 2, 2")
A(f"v_and_b32 v{vq}, 3, v{vLANE}")
A(f"v_lshlrev_b32 v{TMP}, 1, v{vG}")
A(f"v_lshrrev_b32 v{TMP+1}, 1, v{vq}")
A(f"v_add_u32 v{TMP}, v{TMP}, v{TMP+1}")
A(f"v_lshrrev_b32 v{TMP+1}, 1, v{vr}")
A(f"v_lshlrev_b32 v{TMP+1}, 2, v{TMP+1}")
A(f"v_xor_b32 v{TMP}, v{TMP}, v{TMP+1}")
A(f"v_lshlrev_b32 v{TMP}, 4, v{TMP}")
A(f"v_lshl_add_u32 v{TMP}, v{vr}, 7, v{TMP}")
A(f"v_and_b32 v{TMP+1}, 1, v{vq}")
A(f"v_lshl_add_u32 v{TMP}, v{TMP+1}, 3, v{TMP}")
vKVR = TMP + 11
A(f"v_add_u32 v{vKVR}, s27, v{TMP}")
A(f"v_and_b32 v{TMP}, 31, v{vLANE}")
A(f"v_lshrrev_b32 v{TMP+1}, 5, v{vLANE}")
A(f"v_bfe_u32 v{TMP+2}, v{vLANE}, 1, 3")
A(f"v_xor_b32 v{TMP+1}, v{TMP+1}, v{TMP+2}")
A(f"v_lshlrev_b32 v{TMP+1}, 4, v{TMP+1}")
A(f"v_lshl_add_u32 v{TMP}, v{TMP}, 7, v{TMP+1}")
A(f"s_lshl_b32 s24, s{sWAVE}, 12")
A(f"v_add_u32 v{vRX}, s24, v{TMP}")
for s in range(1, 4):
    A(f"v_xor_b32 v{vRX+s}, {32*s}, v{vRX}")
for s in range(4):
    A(f"v_xor_b32 v{vRX+4+s}, 4096, v{vRX+s}")
A(f"s_lshl_b32 s24, s{sWC}, 1")
A(f"s_add_u32 s24, s24, s{sWR}")
A(f"v_xor_b32 v{TMP}, s24, v{vr}")
A(f"v_lshlrev_b32 v{TMP}, 6, v{TMP}")
A(f"v_lshl_add_u32 v{TMP}, v{vr}, 8, v{TMP}")
A(f"v_lshrrev_b32 v{TMP+1}, 1, v{vG}")
A(f"v_lshl_add_u32 v{TMP}, v{TMP+1}, 11, v{TMP}")
A(f"v_and_b32 v{TMP+1}, 1, v{vG}")
A(f"v_lshl_add_u32 v{TMP}, v{TMP+1}, 5, v{TMP}")
A(f"v_lshl_add_u32 v{TMP}, v{vq}, 3, v{TMP}")
A(f"v_add_u32 v{vRW}, 16384, v{TMP}")
A(f"v_xor_b32 v{vRW+1}, 64, v{vRW}")
for i in range(4): A(f"v_mov_b32 v{vZ+i}, 0")
A(f"v_mov_b32 v{vSUM}, 0"); A(f"v_mov_b32 v{vSQ}, 0"); A(f"v_mov_b32 v{vCS}, 0")
for i in range(4):
    A(f"v_mfma_f32_32x32x16_bf16 {v(ACC+16*i,16)}, {v(vZ,4)}, {v(vZ,4)}, 0")
A("s_waitcnt lgkmcnt(0)")
A(f"s_lshl_b32 s25, s{sC}, 2")
A("s_add_u32 s25, s25, s24")
A("s_lshl_b32 s25, s25, 6")
A(f"v_and_b32 v{TMP}, 31, v{vLANE}")
A(f"v_lshl_add_u32 v{TMP}, v{TMP}, 1, s25")
vm(f"global_load_ushort v{vB1}, v{TMP}, s[{pB1}:{pB1+1}]", "b1")

C("KV phase")
VM.wait("kv")
stamp()
P = TMP + 12
VV = TMP + 22
for a_ in range(1, 6):
    lg(f"ds_read_b64_tr_b16 {v(P+2*(a_-1),2)}, v{vKVR} offset:{512*a_}", "k")
for a_ in range(4):
    lg(f"ds_read_b64_tr_b16 {v(VV+2*a_,2)}, v{vKVR} offset:{3072+512*a_}", "v")
S0, S1 = TMP + 4, TMP + 5
Wa, Wb, Wc, Wd, We = TMP, TMP + 1, TMP + 2, TMP + 3, TMP + 6
A(f"v_alignbit_b32 v{Wa}, v{S0}, v{S0}, 16")
A(f"v_alignbit_b32 v{Wb}, v{S1}, v{S1}, 16")
A(f"v_and_b32 v{Wc}, 0xffff, v{S0}")
A(f"v_and_b32 v{We}, 0xffff0000, v{S1}")
A(f"v_and_b32 v{Wd}, 0xffff, v{S1}")
A(f"v_and_b32 v{TMP+7}, 0xffff0000, v{S0}")
A(f"v_or_b32 v{Wd}, v{Wd}, v{TMP+7}")
KS = TMP + 30
LG.wait("k")
for tau in range(16):
    i = tau // 2 + 2
    w = Wa if tau & 1 else Wc
    A(f"v_dot2_f32_bf16 v{KS+tau}, v{P+i}, v{w}, 0")
for tau in range(16):
    i = tau // 2 + 2
    w = Wb if tau & 1 else Wd
    A(f"v_dot2c_f32_bf16 v{KS+tau}, v{P+i-1}, v{w}")
for tau in range(0, 16, 2):
    i = tau // 2 + 2
    A(f"v_dot2c_f32_bf16 v{KS+tau}, v{P+i-2}, v{We}")
LG.wait("v")
UV = TMP + 46
for i in range(8):
    A(f"v_lshlrev_b32 v{UV+2*i}, 16, v{VV+i}")
    A(f"v_and_b32 v{UV+2*i+1}, 0xffff0000, v{VV+i}")
for i in range(8):
    A(f"v_pk_mul_f32 {v(KS+2*i,2)}, {v(KS+2*i,2)}, {v(UV+2*i,2)}")
OUTR = TMP + 12
assert OUTR % 4 == 0
for p in range(4):
    for h in range(2):
        A(f"v_cvt_pk_bf16_f32 v{OUTR+2*p+h}, v{KS+8*h+p}, v{KS+8*h+4+p}")
A(f"v_lshlrev_b32 v{TMP}, 12, v{vLANE}")
A(f"s_lshl_b32 s24, s{sC2}, 18")
A(f"s_lshl_b32 s25, s{sR2}, 2")
A(f"s_add_u32 s25, s25, s{sWAVE}")
A("s_lshl_b32 s25, s25, 5")
A("s_add_u32 s24, s24, s25")
A(f"s_add_u32 s24, s24, {WS_KVT}")
vm(f"buffer_store_dwordx4 {v(OUTR,4)}, v{TMP}, {srd(SWS)}, s24 offen sc1", "kvst")
vm(f"buffer_store_dwordx4 {v(OUTR+4,4)}, v{TMP}, {srd(SWS)}, s24 offen offset:16 sc1", "kvst")
vm(f"buffer_load_dword v{vTOK}, v{vZ}, {srd(SDBG)}, 0 offen sc1", "tok")
stamp()

A(f"s_mul_i32 s{sW2OFF}, s{sWAVE}, 401408")
A(f"s_lshl_b32 s24, s{sC2}, 7")
A(f"s_add_u32 s{sW2OFF}, s{sW2OFF}, s24")
A(f"s_lshl_b32 s{sW2M0}, s{sWAVE}, 13")

def issue_w2_chunk(m0_sreg_or_imm, tag):
    A(f"s_add_u32 m0, s{sW2M0}, {m0_sreg_or_imm}")
    A(f"s_add_u32 s24, s{sW2OFF}, {32*896}")
    for g in range(4):
        vm(f"buffer_load_dwordx4 v{vDR+g}, {srd(SW2)}, s{sW2OFF} offen offset:{1024*g} lds", tag)
    A("s_add_u32 m0, m0, 4096")
    A(f"s_add_u32 s{sW2OFF}, s{sW2OFF}, {64*896}")
    for g in range(4):
        vm(f"buffer_load_dwordx4 v{vDR+g}, {srd(SW2)}, s24 offen offset:{1024*g} lds", tag)

C("GEMM1")
def g1_reads(s, F):
    A(f"ds_read_b128 {v(F,4)}, v{vRX+s}")
    A(f"ds_read_b64_tr_b16 {v(F+8,2)}, v{vRW} offset:{4096*s}")
    A(f"ds_read_b64_tr_b16 {v(F+10,2)}, v{vRW} offset:{4096*s+1024}")
    A(f"ds_read_b128 {v(F+4,4)}, v{vRX+4+s}")
    A(f"ds_read_b64_tr_b16 {v(F+12,2)}, v{vRW+1} offset:{4096*s}")
    A(f"ds_read_b64_tr_b16 {v(F+14,2)}, v{vRW+1} offset:{4096*s+1024}")
def g1_mfma(F):
    for n, (jf, tt) in enumerate(((0, 0), (0, 1), (1, 0), (1, 1))):
        A(f"v_mfma_f32_32x32x16_bf16 {v(ACC+16*(2*jf+tt),16)}, {v(F+8+4*jf,4)}, {v(F+4*tt,4)}, {v(ACC+16*(2*jf+tt),16)}")
        A(f"v_dot2c_f32_bf16 v{vSUM}, s{sONES}, v{F+n}")
        A(f"v_dot2c_f32_bf16 v{vSQ}, v{F+n}, v{F+n}")
        A(f"v_dot2c_f32_bf16 v{vCS}, s{sONES}, v{F+8+n}")

VM.wait("c0")
A("s_barrier")
stamp()
g1_reads(0, FA)
A(f"s_mov_b32 s{sCNT}, 0")
LB("L_g1")
g1_reads(1, FB); A("s_waitcnt lgkmcnt(6)"); g1_mfma(FA)
g1_reads(2, FA); A("s_waitcnt lgkmcnt(6)"); g1_mfma(FB)
g1_reads(3, FB); A("s_waitcnt lgkmcnt(6)"); g1_mfma(FA)
A(f"s_cmp_eq_u32 s{sCNT}, 6")
A("s_cbranch_scc1 L_g1_last")
A("s_waitcnt vmcnt(16) lgkmcnt(0)")
A("s_barrier")
A(f"s_cmp_eq_u32 s{sCNT}, 3")
A(f"s_cselect_b32 s{sDELTA}, -3, 1")
A(f"s_lshl_b32 s{sDELTA}, s{sDELTA}, 15")
for r_ in list(range(vRX, vRX + 8)) + [vRW, vRW + 1]:
    A(f"v_add_u32 v{r_}, s{sDELTA}, v{r_}")
g1_reads(0, FA)
A(f"s_cmp_ge_u32 s{sCNT}, 3")
A("s_cbranch_scc1 L_g1_w2")
issue_g1_chunk()
A(f"s_add_u32 s{sM0X}, s{sM0X}, 32768")
A("s_branch L_g1_cont")
LB("L_g1_w2")
A(f"s_cmp_eq_u32 s{sCNT}, 5")
A("s_cbranch_scc1 L_g1_c5")
A(f"s_cmp_eq_u32 s{sCNT}, 3")
A("s_cselect_b32 s25, 98304, 0")
A("s_cbranch_scc0 L_g1_w2b")
LB("L_tok")
A(f"v_readfirstlane_b32 s{sTOK}, v{vTOK}")
A(f"s_cmp_lg_u32 s{sTOK}, 0")
A("s_cbranch_scc1 L_tok_ok")
spin_guard("L_tok_ok")
A("s_sleep 2")
A(f"buffer_load_dword v{vTOK}, v{vZ}, {srd(SDBG)}, 0 offen sc1")
A("s_waitcnt vmcnt(0)")
A("s_branch L_tok")
LB("L_tok_ok")
A(f"s_cmp_lg_u32 s{sWAVE}, 0")
A("s_cbranch_scc1 L_g1_w2b")
A(f"s_lshl_b32 s24, s{sC2}, 7")
A(f"s_lshl_b32 s26, s{sR2}, 2")
A("s_add_u32 s24, s24, s26")
A(f"buffer_store_dword v{vTOK}, v{vZ}, {srd(SWS)}, s24 offen sc1")
LB("L_g1_w2b")
issue_w2_chunk("s25", "w")
A("s_branch L_g1_cont")
LB("L_g1_c5")
A("s_lshr_b32 s24, s2, 5")
A("s_lshl_b32 s24, s24, 7")
A(f"v_and_b32 v{TMP}, 31, v{vLANE}")
A(f"v_lshlrev_b32 v{TMP}, 2, v{TMP}")
vKF = TMP + 1
A(f"buffer_load_dword v{vKF}, v{TMP}, {srd(SWS)}, s24 offen sc1")
A("s_lshl_b32 s24, s2, 2")
A(f"s_add_u32 s24, s24, s{sWAVE}")
A("s_lshl_b32 s24, s24, 11")
A(f"s_mul_i32 s25, s{sWR}, 4352")
A(f"s_lshl_b32 s26, s{sWC}, 11")
A("s_add_u32 s25, s25, s26")
A(f"s_add_u32 m0, s25, {HL+256}")
A("s_nop 0")
A(f"buffer_load_dwordx4 v{vL16}, {srd(SH)}, s24 offen lds")
A(f"buffer_load_dwordx4 v{vL16}, {srd(SH)}, s24 offen offset:1024 lds")
LB("L_g1_cont")
g1_mfma(FB)
A(f"s_add_u32 s{sCNT}, s{sCNT}, 1")
A("s_branch L_g1")
LB("L_g1_last")
A("s_waitcnt lgkmcnt(0)")
g1_mfma(FB)
VM.set(["w0"] * 8 + ["w1"] * 8 + ["kf", "h", "h"])
LG.set([])
stamp()

C("stats")
T = TMP + 4
A("s_nop 2")
for k_, r_ in enumerate((vSUM, vSQ, vCS)):
    A(f"v_mov_b32 v{T+k_}, v{r_}")
A("s_nop 1")
for k_, r_ in enumerate((vSUM, vSQ, vCS)):
    A(f"v_permlane32_swap_b32 v{r_}, v{T+k_}")
A("s_nop 1")
for k_, r_ in enumerate((vSUM, vSQ, vCS)):
    A(f"v_add_f32 v{r_}, v{r_}, v{T+k_}")
INV = 0x3b124925
A(f"v_mul_f32 v{vSUM}, {INV:#x}, v{vSUM}")
A(f"v_mul_f32 v{vSQ}, {INV:#x}, v{vSQ}")
A(f"v_fma_f32 v{vSQ}, -v{vSUM}, v{vSUM}, v{vSQ}")
A(f"v_max_f32 v{vSQ}, 0, v{vSQ}")
A(f"v_cvt_pk_bf16_f32 v{vSQ}, v{vSQ}, v{vSQ}")
A(f"v_and_b32 v{vSQ}, 0xffff0000, v{vSQ}")
A(f"v_add_f32 v{vSQ}, 0x3727c5ac, v{vSQ}")
A(f"v_cvt_pk_bf16_f32 v{vSQ}, v{vSQ}, v{vSQ}")
A(f"v_and_b32 v{vSQ}, 0xffff0000, v{vSQ}")
A(f"v_sqrt_f32 v{vSQ}, v{vSQ}")
GX, GW = FA, FA + 8
A(f"v_cvt_pk_bf16_f32 v{GW}, v{vCS}, v{vCS}")
A(f"v_cvt_pk_bf16_f32 v{GX}, -v{vSUM}, -v{vSUM}")
A(f"v_cvt_pk_bf16_f32 v{GX+1}, -v{vSUM}, v{vSQ}")
A(f"v_and_b32 v{T}, 0xffff0000, v{GW}")
A(f"v_sub_f32 v{T}, v{vCS}, v{T}")
A(f"v_cvt_pk_bf16_f32 v{GW}, v{vCS}, v{T}")
A(f"v_and_b32 v{T+1}, 0xffff0000, v{GW}")
A(f"v_sub_f32 v{T}, v{T}, v{T+1}")
A(f"v_lshlrev_b32 v{T+1}, 16, v{vB1}")
A(f"v_cvt_pk_bf16_f32 v{GW+1}, v{T}, v{T+1}")
A(f"v_and_b32 v{T}, 31, v{vLANE}")
A(f"v_lshlrev_b32 v{T}, 3, v{T}")
A(f"s_lshl_b32 s24, s{sWAVE}, 8")
A(f"v_add_u32 v{T+1}, s24, v{T}")
A(f"s_lshl_b32 s25, s{sWC}, 1")
A(f"s_add_u32 s25, s25, s{sWR}")
A("s_lshl_b32 s25, s25, 8")
A(f"v_add_u32 v{T+2}, s25, v{T}")
ofs = AUGX - 131072
A(f"v_add_u32 v{T+1}, 131072, v{T+1}")
A(f"v_add_u32 v{T+2}, 131072, v{T+2}")
A(f"ds_write_b64 v{T+1}, {v(GX,2)} offset:{AUGX-131072}")
A(f"ds_write_b64 v{T+2}, {v(GW,2)} offset:{AUGW-131072}")
A(f"v_and_b32 v{T+3}, 0xffff0000, v{GX+1}")
A(f"v_mul_f32 v{T+3}, v{T+3}, v{T+3}")
A(f"v_rcp_f32 v{GX+2}, v{T+3}")
A(f"v_mov_b32 v{GX+3}, s{sTOK}")
A(f"s_cmp_lg_u32 s{sC}, 0")
A("s_cbranch_scc1 L_nostat")
A(f"s_lshl_b32 s24, s{sR}, 2")
A(f"s_add_u32 s24, s24, s{sWAVE}")
A("s_lshl_b32 s24, s24, 9")
A(f"s_add_u32 s24, s24, {WS_STAT}")
A(f"v_lshlrev_b32 v{T+3}, 1, v{T}")
A(f"buffer_store_dwordx4 {v(GX,4)}, v{T+3}, {srd(SWS)}, s24 offen sc1")
LB("L_nostat")
A(f"v_xor_b32 v{T+1}, 256, v{T+1}")
A(f"v_xor_b32 v{T+2}, 256, v{T+2}")
A(f"s_mul_i32 s24, s{sWR}, 4352")
A(f"s_mul_i32 s25, s{sWR}, 4224")
A(f"s_add_u32 s24, s24, {HL}")
A(f"s_add_u32 s25, s25, {KVL}")
A(f"s_cmp_eq_u32 s{sWC}, 0")
A("s_cselect_b32 s24, s24, s25")
A("s_cselect_b32 s25, 0xff00, 0")
A("s_or_b32 s25, s25, 0xff")
A(f"v_add_u32 v{T+3}, s24, v{vL16}")
A("s_mov_b32 exec_lo, s25")
A("s_mov_b32 exec_hi, 0")
A(f"ds_write_b128 v{T+3}, {v(vZ,4)}")
A("s_mov_b64 exec, -1")
A("s_waitcnt lgkmcnt(0)")
A("s_barrier")
lg(f"ds_read_b64 {v(GX+4,2)}, v{T+1} offset:{AUGX-131072}", "aug")
lg(f"ds_read_b64 {v(GW+4,2)}, v{T+2} offset:{AUGW-131072}", "aug")
VM.wait("kf")
LB("L_kvf")
A(f"v_cmp_ne_u32 vcc, s{sTOK}, v{vKF}")
A("s_cbranch_vccz L_kvf_ok")
spin_guard("L_kvf_ok")
A("s_sleep 2")
A("s_lshr_b32 s24, s2, 5")
A("s_lshl_b32 s24, s24, 7")
A(f"buffer_load_dword v{vKF}, v{TMP}, {srd(SWS)}, s24 offen sc1")
A("s_waitcnt vmcnt(0)")
A("s_branch L_kvf")
LB("L_kvf_ok")
A("s_lshl_b32 s24, s2, 2")
A(f"s_add_u32 s24, s24, s{sWAVE}")
A("s_lshl_b32 s24, s24, 11")
A(f"s_add_u32 s24, s24, {WS_KVT}")
A(f"s_mul_i32 s25, s{sWR}, 4224")
A(f"s_lshl_b32 s26, s{sWC}, 11")
A("s_add_u32 s25, s25, s26")
A(f"s_add_u32 m0, s25, {KVL+128}")
for r_ in (GX + 2, GX + 3, GX + 6, GX + 7, GW + 2, GW + 3, GW + 6, GW + 7):
    A(f"v_mov_b32 v{r_}, 0")
vm(f"buffer_load_dwordx4 v{vL16}, {srd(SWS)}, s24 offen sc1 lds", "kvl")
vm(f"buffer_load_dwordx4 v{vL16}, {srd(SWS)}, s24 offen offset:1024 sc1 lds", "kvl")
LG.waitall()
for r_ in (GX, GX + 1, GX + 4, GX + 5):
    A(f"v_cndmask_b32 v{r_}, 0, v{r_}, s[{sLO32}:{sLO32+1}]")
A("s_nop 1")
for jf, tt in ((0, 0), (0, 1), (1, 0), (1, 1)):
    A(f"v_mfma_f32_32x32x16_bf16 {v(ACC+16*(2*jf+tt),16)}, {v(GW+4*jf,4)}, {v(GX+4*tt,4)}, {v(ACC+16*(2*jf+tt),16)}")
A(f"s_lshl_b32 s24, s{sR}, 2")
A(f"s_add_u32 s24, s24, s{sWAVE}")
A("s_xor_b32 s25, s24, 1")
A("s_mul_i32 s24, s24, 114688")
A("s_mul_i32 s25, s25, 114688")
A(f"s_lshl_b32 s26, s{sC}, 13")
A(f"s_lshl_b32 s27, s{sWC}, 12")
A("s_add_u32 s26, s26, s27")
A(f"s_add_u32 s26, s26, {WS_H}")
A(f"s_add_u32 s{sHOFF0}, s24, s26")
A(f"s_add_u32 s{sHOFF1}, s25, s26")
A(f"s_lshl_b32 s24, s{sWR}, 11")
A(f"v_add_u32 v{T}, s24, v{vL16}")
A(f"v_xor_b32 v{T+1}, 2048, v{T}")
stamp()
C("H epilogue")
for n, (jf, tt) in enumerate(((0, 0), (0, 1), (1, 0), (1, 1))):
    b = ACC + 16 * (2 * jf + tt)
    if n == 0: A("s_nop 3")
    for i in range(16): A(f"v_max_f32 v{b+i}, 0, v{b+i}")
    for i in range(8): A(f"v_pk_mul_f32 {v(b+2*i,2)}, {v(b+2*i,2)}, {v(b+2*i,2)}")
    o = FB + 8 * (n & 1)
    for i in range(8): A(f"v_cvt_pk_bf16_f32 v{o+i}, v{b+2*i}, v{b+2*i+1}")
    so = sHOFF0 if tt == 0 else sHOFF1
    vm(f"buffer_store_dwordx4 {v(o,4)}, v{T+jf}, {srd(SWS)}, s{so} offen sc1", "hst")
    vm(f"buffer_store_dwordx4 {v(o+4,4)}, v{T+jf}, {srd(SWS)}, s{so} offen offset:1024 sc1", "hst")
stamp()
issue_w2_chunk(32768, "w2")
issue_w2_chunk(65536, "w3")

vPW = vRX
A(f"v_lshrrev_b32 v{vG}, 4, v{vLANE}")
A(f"v_bfe_u32 v{vr}, v{vLANE}, 2, 2")
A(f"v_and_b32 v{vq}, 3, v{vLANE}")
A(f"v_and_b32 v{T}, 1, v{vG}")
A(f"v_lshlrev_b32 v{T}, 1, v{T}")
A(f"v_lshrrev_b32 v{T+1}, 1, v{vq}")
A(f"v_add_u32 v{T}, v{T}, v{T+1}")
A(f"v_lshrrev_b32 v{T+1}, 1, v{vr}")
A(f"v_xor_b32 v{T+1}, s{sWR}, v{T+1}")
A(f"v_lshl_add_u32 v{T}, v{T+1}, 2, v{T}")
A(f"v_lshlrev_b32 v{T}, 4, v{T}")
A(f"v_lshl_add_u32 v{T}, v{vr}, 7, v{T}")
A(f"v_lshrrev_b32 v{T+1}, 1, v{vG}")
A(f"v_lshl_add_u32 v{T}, v{T+1}, 9, v{T}")
A(f"v_and_b32 v{T+1}, 1, v{vq}")
A(f"v_lshl_add_u32 v{T}, v{T+1}, 3, v{T}")
A(f"v_add_u32 v{vPW}, s{sW2M0}, v{T}")
A(f"v_xor_b32 v{vPW+1}, 64, v{vPW}")
A(f"v_add_u32 v{vPW+2}, 65536, v{vPW}")
A(f"v_add_u32 v{vPW+3}, 65536, v{vPW+1}")

W2SLOT = [3, 0, 1, 2, 3, 0, 1]
def pump(j):
    VM.wait(f"w{j}")
    sl = W2SLOT[j]
    for s in range(4):
        for jd in range(2):
            for e in range(2):
                lg(f"ds_read_b64_tr_b16 {a(32*j+8*s+4*jd+2*e,2)}, v{vPW+jd+2*(sl>>1)} offset:{32768*(sl&1)+2048*s+1024*e}", f"p{j}")
def refill(j):
    LG.waitall()
    issue_w2_chunk(32768 * W2SLOT[j], f"w{j}")

pump(0); refill(4)
pump(1); refill(5)
VM.wait("hst")
A(f"s_lshl_b32 s24, s{sR}, 1")
A(f"s_add_u32 s24, s24, s{sWR}")
A("s_lshl_b32 s24, s24, 7")
A(f"s_lshl_b32 s25, s{sC}, 1")
A(f"s_add_u32 s25, s25, s{sWC}")
A("s_lshl_b32 s25, s25, 2")
A("s_add_u32 s24, s24, s25")
A(f"s_add_u32 s24, s24, {WS_HF}")
vm(f"buffer_store_dword v{vTOK}, v{vZ}, {srd(SWS)}, s24 offen sc1", "hf")
stamp()

C("conv")
CA = 96
CBF = 160
vCA0, vCA1, vCB, vYW, vCW = 4, 5, 6, 7, 8
vZ2 = 9
CT = 172
A(f"v_lshl_add_u32 v{CT}, v{vG}, 1, v{vr}")
A(f"v_lshlrev_b32 v{CT}, 5, v{CT}")
A(f"v_lshl_add_u32 v{CT}, v{vq}, 3, v{CT}")
A(f"s_mul_i32 s24, s{sWR}, 4224")
A(f"s_add_u32 s24, s24, {KVL+128-96}")
A(f"v_add_u32 v{vCA0}, s24, v{CT}")
A(f"v_add_u32 v{vCA1}, 2048, v{vCA0}")
A(f"v_sub_u32 v{CT}, v{vq}, v{vr}")
A(f"v_lshlrev_b32 v{CT}, 3, v{CT}")
A(f"v_lshlrev_b32 v{CT+1}, 6, v{vG}")
A(f"v_sub_u32 v{CT}, v{CT}, v{CT+1}")
A(f"s_mul_i32 s24, s{sWR}, 4352")
A(f"s_lshl_b32 s25, s{sWC}, 7")
A("s_add_u32 s24, s24, s25")
A(f"s_add_u32 s24, s24, {HL+256+96-32}")
A(f"v_add_u32 v{vCB}, s24, v{CT}")
A(f"s_mul_i32 s24, s{sWR}, {YL1-YL0}")
A(f"s_lshl_b32 s25, s{sWC}, 8")
A("s_add_u32 s25, s25, s24")
A(f"s_add_u32 s25, s25, {YL0}")
A(f"v_lshl_add_u32 v{vYW}, v{vLANE}, 2, s25")
A(f"s_mul_i32 s26, s{sWR}, 544")
A(f"s_lshl_b32 s25, s{sWC}, 4")
A("s_add_u32 s25, s25, s26")
A(f"s_add_u32 s25, s25, {CARRY+16}")
A(f"v_mov_b32 v{vCW}, s25")
A(f"v_mov_b32 v{vZ2}, 0")
A("s_lshl_b32 s25, s2, 1")
A(f"s_add_u32 s25, s25, s{sWR}")
A("s_lshl_b32 s25, s25, 1")
A(f"v_mov_b32 v{CT}, s25")
vDv = 10
vm(f"global_load_ushort v{vDv}, v{CT}, s[{pD}:{pD+1}]", "dv")
A("s_barrier")
stamp()
def cb_read(w2):
    b = CBF + 4 * (w2 % 3)
    lg(f"ds_read_b64_tr_b16 {v(b,2)}, v{vCB} offset:{256*w2+32}", f"b{w2}")
    lg(f"ds_read_b64_tr_b16 {v(b+2,2)}, v{vCB} offset:{256*w2}", f"b{w2}")
cb_read(0)
for sg in range(16):
    base = vCA0 if sg < 8 else vCA1
    o = 32 * (sg % 8)
    lg(f"ds_read2_b64 {v(CA+4*sg,4)}, v{base} offset0:{o} offset1:{o+4}", f"a{sg}")
    if sg == 3: cb_read(1)
for w2 in range(16):
    LG.wait(f"b{w2}")
    b = CBF + 4 * (w2 % 3)
    for sg in range(16 - w2):
        if w2 == 0: LG.wait(f"a{sg}")
        d = ACC + 4 * (sg + w2)
        src = "0" if w2 == 0 else v(d, 4)
        A(f"v_mfma_f32_16x16x32_bf16 {v(d,4)}, {v(CA+4*sg,4)}, {v(b,4)}, {src}")
        if w2 == 0 and sg == 15: cb_read(2)
        elif w2 > 0 and sg == 0 and w2 + 2 < 16: cb_read(w2 + 2)
    if w2 == 3:
        pump(2)
    if w2 == 5:
        refill(6)
A("s_nop 7")
DPP = "wave_shr:1 row_mask:0xf bank_mask:0xf bound_ctrl:0"
for lvl in (2, 1, 0):
    for t2 in range(16):
        d = ACC + 4 * t2
        A(f"v_add_f32_dpp v{d+lvl}, v{d+lvl+1}, v{d+lvl} {DPP}")
LG.waitall()
A("s_barrier")
for t2 in range(16):
    lg(f"ds_write_b32 v{vYW}, v{ACC+4*t2} offset:{512*t2}", "yw")
A("s_lshl_b64 exec, 1, 63")
for t2 in range(16):
    lg(f"ds_write_b128 v{vCW}, {v(ACC+4*t2,4)} offset:{32*t2}", "yw")
for i in range(4): A(f"v_mov_b32 v{CT+i}, 0")
A(f"s_add_u32 s26, s26, {CARRY}")
A(f"v_mov_b32 v{CT+4}, s26")
lg(f"ds_write_b128 v{CT+4}, {v(CT,4)}", "yw")
A("s_mov_b64 exec, -1")
A(f"s_mul_i32 s24, s{sWR}, {YL1-YL0}")
A(f"s_lshl_b32 s25, s{sWC}, 12")
A("s_add_u32 s25, s25, s24")
A(f"s_add_u32 s25, s25, {YL0}")
A(f"v_lshl_add_u32 v{CT+5}, v{vLANE}, 6, s25")
A(f"s_mul_i32 s24, s{sWR}, 4224")
A(f"s_lshl_b32 s25, s{sWC}, 11")
A("s_add_u32 s25, s25, s24")
A(f"s_add_u32 s25, s25, {KVL+128}")
A(f"v_lshl_add_u32 v{CT+6}, v{vLANE}, 5, s25")
A(f"v_lshrrev_b32 v{CT+7}, 2, v{vLANE}")
A(f"s_lshl_b32 s25, s{sWC}, 4")
A(f"v_add_u32 v{CT+7}, s25, v{CT+7}")
A(f"v_lshlrev_b32 v{CT+7}, 4, v{CT+7}")
A(f"v_and_b32 v{CT+8}, 3, v{vLANE}")
A(f"v_cmp_eq_u32 vcc, 0, v{CT+8}")
A("s_nop 1")
A(f"v_cndmask_b32 v{CT+7}, 0, v{CT+7}, vcc")
A(f"v_add_u32 v{CT+7}, s26, v{CT+7}")
LG.waitall()
A("s_barrier")
Y = 96; KVr = 112; CY = 120; U = 124
for i in range(4): lg(f"ds_read_b128 {v(Y+4*i,4)}, v{CT+5} offset:{16*i}", "y")
for i in range(2): lg(f"ds_read_b128 {v(KVr+4*i,4)}, v{CT+6} offset:{16*i}", "y")
lg(f"ds_read_b128 {v(CY,4)}, v{CT+7}", "y")
VM.wait("dv")
A(f"v_lshlrev_b32 v{vDv}, 16, v{vDv}")
LG.waitall()
for i in range(3): A(f"v_add_f32 v{Y+i}, v{Y+i}, v{CY+1+i}")
for p in range(4):
    for h in range(2):
        A(f"v_lshlrev_b32 v{U}, 16, v{KVr+2*p+h}")
        A(f"v_and_b32 v{U+1}, 0xffff0000, v{KVr+2*p+h}")
        A(f"v_fmac_f32 v{Y+8*h+p}, v{U}, v{vDv}")
        A(f"v_fmac_f32 v{Y+8*h+4+p}, v{U+1}, v{vDv}")
for i in range(8): A(f"v_cvt_pk_bf16_f32 v{KVr+i}, v{Y+2*i}, v{Y+2*i+1}")
A("s_lshl_b32 s24, s2, 2")
A(f"s_add_u32 s24, s24, s{sWAVE}")
A("s_lshl_b32 s24, s24, 11")
A(f"s_add_u32 s24, s24, {WS_YT}")
A(f"v_lshlrev_b32 v{CT}, 5, v{vLANE}")
vm(f"buffer_store_dwordx4 {v(KVr,4)}, v{CT}, {srd(SWS)}, s24 offen sc1", "yst")
vm(f"buffer_store_dwordx4 {v(KVr+4,4)}, v{CT}, {srd(SWS)}, s24 offen offset:16 sc1", "yst")
stamp()
pump(3); pump(4); pump(5); pump(6)
VM.wait("yst")
A("s_lshl_b32 s24, s2, 1")
A(f"s_add_u32 s24, s24, s{sWR}")
A(f"s_mul_i32 s25, s{sWC}, 448")
A("s_add_u32 s24, s24, s25")
A("s_lshl_b32 s24, s24, 2")
A(f"s_add_u32 s24, s24, {WS_YF}")
vm(f"buffer_store_dword v{vTOK}, v{vZ2}, {srd(SWS)}, s24 offen sc1", "yf")

C("GEMM2")
A(f"s_lshl_b32 s24, s{sR2}, 7")
A(f"s_mul_i32 s25, s{sWAVE}, 28")
A("s_add_u32 s24, s24, s25")
A(f"s_add_u32 s24, s24, {WS_HF}")
A(f"v_min_u32 v{CT}, 6, v{vLANE}")
A(f"v_lshlrev_b32 v{CT}, 2, v{CT}")
A(f"s_lshl_b32 s25, s{sR2}, 1")
A(f"s_add_u32 s25, s25, s{sWC}")
A("s_xor_b32 s26, s25, 1")
A("s_mul_i32 s25, s25, 114688")
A("s_mul_i32 s26, s26, 114688")
A(f"s_mul_i32 s27, s{sWAVE}, 28672")
A(f"s_add_u32 s27, s27, {WS_H}")
A(f"s_add_u32 s{sHOFF0}, s25, s27")
A(f"s_add_u32 s{sHOFF1}, s26, s27")
LB("L_hf")
A(f"buffer_load_dword v{CT+1}, v{CT}, {srd(SWS)}, s24 offen sc1")
A("s_waitcnt vmcnt(0)")
A(f"v_cmp_ne_u32 vcc, s{sTOK}, v{CT+1}")
A("s_cbranch_vccz L_hf_ok")
spin_guard("L_hf_ok")
A("s_sleep 1")
A("s_branch L_hf")
LB("L_hf_ok")
VM.set([])
stamp()
HB = 128
NB = 32
def h_load(n):
    ks, jt = n // 2, n % 2
    so = sHOFF0 if jt == 0 else sHOFF1
    if ks % 4 == 0 and ks > 0:
        A(f"s_add_u32 s{so}, s{so}, 4096")
    d = HB + 4 * (n % NB)
    vm(f"buffer_load_dwordx4 {v(d,4)}, v{vL16}, {srd(SWS)}, s{so} offen offset:{1024*(ks%4)} sc1", f"h{n}")
for n in range(NB): h_load(n)
E = 96
vXO = 4
sXO = 13
A(f"v_and_b32 v{E}, 31, v{vLANE}")
A(f"v_mul_u32_u24 v{vXO}, 896, v{E}")
A(f"v_lshrrev_b32 v{E+1}, 5, v{vLANE}")
A(f"v_lshl_add_u32 v{vXO}, v{E+1}, 3, v{vXO}")
A(f"s_lshl_b32 s24, s{sR2}, 1")
A(f"s_add_u32 s24, s24, s{sWC}")
A(f"s_mul_i32 s{sXO}, s24, 28672")
A(f"s_lshl_b32 s25, s{sC2}, 1")
A(f"s_add_u32 s25, s25, s{sWR}")
A("s_lshl_b32 s26, s25, 6")
A(f"s_add_u32 s{sXO}, s{sXO}, s26")
XV = 100
B2V = 108
STG = 116
YV = 120
for j in range(4):
    vm(f"buffer_load_dwordx2 {v(XV+2*j,2)}, v{vXO}, {srd(SX)}, s{sXO} offen offset:{16*j}", "ex")
A(f"v_lshl_add_u32 v{E+2}, v{E+1}, 3, s26")
for j in range(4):
    vm(f"global_load_dwordx2 {v(B2V+2*j,2)}, v{E+2}, s[{pB2}:{pB2+1}] offset:{16*j}", "ex")
vST = 5
A(f"v_lshlrev_b32 v{vST}, 4, v{E}")
sST = 14
A(f"s_lshl_b32 s{sST}, s24, 9")
A(f"s_add_u32 s{sST}, s{sST}, {WS_STAT}")
vm(f"buffer_load_dwordx4 {v(STG,4)}, v{vST}, {srd(SWS)}, s{sST} offen sc1", "st")
vYFo, vYF = 6, 7
sYF = 15
A(f"s_lshr_b32 s26, s{sR2}, 4")
A("s_mul_i32 s26, s26, 1792")
A("s_lshl_b32 s27, s25, 7")
A(f"s_add_u32 s{sYF}, s26, s27")
A(f"s_add_u32 s{sYF}, s{sYF}, {WS_YF}")
A(f"v_lshlrev_b32 v{vYFo}, 2, v{E}")
vYD = 8
sYD = 28
A(f"v_lshrrev_b32 v{E+2}, 2, v{vLANE}")
A(f"v_lshlrev_b32 v{vYD}, 12, v{E+2}")
A(f"v_and_b32 v{E+2}, 3, v{vLANE}")
A(f"v_lshl_add_u32 v{vYD}, v{E+2}, 4, v{vYD}")
A(f"s_lshl_b32 s{sYD}, s25, 17")
A("s_lshl_b32 s26, s24, 6")
A(f"s_add_u32 s{sYD}, s{sYD}, s26")
A(f"s_add_u32 s{sYD}, s{sYD}, {WS_YT}")
YE = CB
YE = 65536 + 49152
vYR = 9
A(f"v_lshrrev_b32 v{E+2}, 4, v{vLANE}")
A(f"v_bfe_u32 v{E+3}, v{vLANE}, 2, 2")
A(f"v_lshl_add_u32 v{E+3}, v{E+1}, 2, v{E+3}")
A(f"v_lshlrev_b32 v{vYR}, 6, v{E+3}")
A(f"v_and_b32 v{E+2}, 1, v{E+2}")
A(f"v_lshl_add_u32 v{vYR}, v{E+2}, 5, v{vYR}")
A(f"v_and_b32 v{E+2}, 3, v{vLANE}")
A(f"v_lshl_add_u32 v{vYR}, v{E+2}, 3, v{vYR}")
A(f"s_add_u32 s29, s{sW2M0}, 98304")
A(f"v_add_u32 v{vYR}, s29, v{vYR}")
LG.waitall()
for ks in range(28):
    for jt in range(2):
        n = 2 * ks + jt
        VM.wait(f"h{n}")
        hb = HB + 4 * (n % NB)
        for jd in range(2):
            d = ACC + 16 * (2 * jd + jt)
            src = "0" if ks == 0 else v(d, 16)
            A(f"v_mfma_f32_32x32x16_bf16 {v(d,16)}, {a(8*ks+4*jd,4)}, {v(hb,4)}, {src}")
        if n + NB < 56: h_load(n + NB)
        if n == 8:
            vm(f"buffer_load_dword v{vYF}, v{vYFo}, {srd(SWS)}, s{sYF} offen sc1", "yfl")
        if n == 41:
            LB("L_yf")
            A(f"v_cmp_ne_u32 vcc, s{sTOK}, v{vYF}")
            A("s_cbranch_vccz L_yf_ok")
            spin_guard("L_yf_ok")
            A("s_sleep 1")
            A(f"buffer_load_dword v{vYF}, v{vYFo}, {srd(SWS)}, s{sYF} offen sc1")
            A("s_waitcnt vmcnt(0)")
            A("s_branch L_yf")
            LB("L_yf_ok")
            A("s_mov_b32 m0, s29")
            A(f"s_add_u32 s24, s{sYD}, {65536-1024}")
            vm(f"buffer_load_dwordx4 v{vYD}, {srd(SWS)}, s{sYD} offen sc1 lds", "yd")
            vm(f"buffer_load_dwordx4 v{vYD}, {srd(SWS)}, s24 offen offset:1024 sc1 lds", "yd")
            LB("L_stf")
            A(f"v_cmp_ne_u32 vcc, s{sTOK}, v{STG+3}")
            A("s_cbranch_vccz L_stf_ok")
            spin_guard("L_stf_ok")
            A("s_sleep 1")
            A(f"buffer_load_dwordx4 {v(STG,4)}, v{vST}, {srd(SWS)}, s{sST} offen sc1")
            A("s_waitcnt vmcnt(0)")
            A("s_branch L_stf")
            LB("L_stf_ok")
stamp()
C("reduction")
A("s_barrier")
for j in range(1, 4):
    A(f"s_xor_b32 s24, s{sWAVE}, {j}")
    A("s_mul_i32 s24, s24, 12288")
    A(f"s_add_u32 s24, s24, {4096*(j-1)}")
    A(f"v_add_u32 v{10+j}, s24, v{vL16}")
A("s_nop 7")
for j in range(1, 4):
    for i in range(4):
        lg(f"ds_write_b128 v{10+j}, {v(ACC+16*j+4*i,4)} offset:{1024*i}", "rw")
A(f"s_mul_i32 s24, s{sWAVE}, 12288")
A(f"v_add_u32 v10, s24, v{vL16}")
VM.wait("yd")
for j in range(4):
    lg(f"ds_read_b64_tr_b16 {v(YV+2*j,2)}, v{vYR} offset:{512*j}", "yv")
XF = 128
SF = 144
BF = 160
vNM, vRS = 14, 15
A(f"v_lshlrev_b32 v{vNM}, 16, v{STG}")
A(f"v_and_b32 v{vRS}, 0xffff0000, v{STG+1}")
A(f"v_rcp_f32 v{vRS}, v{vRS}")
for i in range(8):
    A(f"v_lshlrev_b32 v{XF+2*i}, 16, v{XV+i}")
    A(f"v_and_b32 v{XF+2*i+1}, 0xffff0000, v{XV+i}")
    A(f"v_lshlrev_b32 v{BF+2*i}, 16, v{B2V+i}")
    A(f"v_and_b32 v{BF+2*i+1}, 0xffff0000, v{B2V+i}")
def rnd(base, tmp):
    for i in range(8):
        A(f"v_cvt_pk_bf16_f32 v{tmp+i}, v{base+2*i}, v{base+2*i+1}")
    for i in range(8):
        A(f"v_lshlrev_b32 v{base+2*i}, 16, v{tmp+i}")
        A(f"v_and_b32 v{base+2*i+1}, 0xffff0000, v{tmp+i}")
RT = 176
for i in range(16): A(f"v_add_f32 v{SF+i}, v{XF+i}, v{vNM}")
rnd(SF, RT)
for i in range(16): A(f"v_mul_f32 v{SF+i}, v{SF+i}, v{vRS}")
rnd(SF, RT)
LG.waitall()
A("s_barrier")
RD = 192
for j in range(3):
    for i in range(4):
        lg(f"ds_read_b128 {v(RD+16*j+4*i,4)}, v10 offset:{4096*j+1024*i}", f"r{j}")
for i in range(8):
    A(f"v_lshlrev_b32 v{RT}, 16, v{YV+i}")
    A(f"v_and_b32 v{RT+1}, 0xffff0000, v{YV+i}")
    A(f"v_mul_f32 v{SF+2*i}, v{SF+2*i}, v{RT}")
    A(f"v_mul_f32 v{SF+2*i+1}, v{SF+2*i+1}, v{RT+1}")
rnd(SF, RT)
for j in range(3):
    LG.wait(f"r{j}")
    for i in range(8):
        A(f"v_pk_add_f32 {v(ACC+2*i,2)}, {v(ACC+2*i,2)}, {v(RD+16*j+2*i,2)}")
stamp()
C("final epilogue")
O = ACC
for i in range(16): A(f"v_mul_f32 v{O+i}, v{O+i}, v{STG+2}")
rnd(O, RT)
for i in range(16): A(f"v_add_f32 v{O+i}, v{O+i}, v{BF+i}")
rnd(O, RT)
G_ = RD
for i in range(16): A(f"v_mul_f32 v{G_+i}, 0xbfb8aa3b, v{O+i}")
for i in range(16): A(f"v_exp_f32 v{G_+i}, v{G_+i}")
for i in range(16): A(f"v_add_f32 v{G_+i}, 1.0, v{G_+i}")
for i in range(16): A(f"v_rcp_f32 v{G_+i}, v{G_+i}")
for i in range(16): A(f"v_mul_f32 v{O+i}, v{O+i}, v{G_+i}")
rnd(O, RT)
for i in range(16): A(f"v_mul_f32 v{O+i}, v{O+i}, v{SF+i}")
rnd(O, RT)
for i in range(16): A(f"v_add_f32 v{O+i}, v{O+i}, v{XF+i}")
for i in range(8): A(f"v_cvt_pk_bf16_f32 v{RT+i}, v{O+2*i}, v{O+2*i+1}")
for j in range(4):
    A(f"buffer_store_dwordx2 {v(RT+2*j,2)}, v{vXO}, {srd(SOUT)}, s{sXO} offen offset:{16*j}")
if TS:
    A("s_waitcnt vmcnt(0)")
    stamp()
    A("s_waitcnt lgkmcnt(0)")
    A("s_lshl_b32 s24, s2, 2")
    A(f"s_add_u32 s24, s24, s{sWAVE}")
    A("s_lshl_b32 s24, s24, 6")
    A(f"s_add_u32 s24, s24, {WS_TS}")
    for i in range(ts_n[0]):
        A(f"v_mov_b32 v10, s{sTS0+2*i}")
        A(f"v_mov_b32 v11, {4*i}")
        A(f"buffer_store_dword v10, v11, {srd(SWS)}, s24 offen")
        A("s_nop 1")
LB("L_end")
A("s_endpgm")
L.append(f""".fill 4096, 4, 0xbf800000
.section .rodata,"a"
.p2align 6
.amdhsa_kernel {KNAME}
  .amdhsa_next_free_vgpr 512
  .amdhsa_next_free_sgpr 102
  .amdhsa_accum_offset 256
  .amdhsa_group_segment_fixed_size 0
  .amdhsa_kernarg_size 112
  .amdhsa_user_sgpr_count 2
  .amdhsa_user_sgpr_kernarg_segment_ptr 1
  .amdhsa_system_sgpr_workgroup_id_x 1
.end_amdhsa_kernel
""")
open(sys.argv[1], "w").write("\n".join(x for x in L if x is not None))
print("stamps:", ts_n[0], file=sys.stderr)
```

```python
import sys

opts = dict(a.split("=") for a in sys.argv[2:])
TS = int(opts.get("ts", "0"))
NB = int(opts.get("nb", "26"))
CONVD = int(opts.get("convd", "4"))
RND = opts.get("rnd", "1111")
TOUCH = int(opts.get("touch", "1"))
G1WAIT = int(opts.get("g1wait", "14"))
KNAME = "recurrent_scan__ssm_conv_h3__dense_activation_squared_relu__prompt_kernel"

WS_KVF = 0x0000
WS_YF = 0x0400
WS_HF = 0x2000
WS_STAT = 0x4000
WS_CS = 0xC000
WS_TS = 0x20000
WS_KVT = 0x100000
WS_YT = 0x300000
WS_H = 0x500000
WS_SIZE = 0x10000000

NH = 30
NWG = 224 + NH
LDS_BYTES = 163840
KVD = 131072
STG = 139264
KVL = 139264
HL = 147712
CARRY = 156416
YL0 = 98304
YL1 = 106496
XS = 114688

L = []
def A(s): L.append("    " + s)
def LB(s): L.append(s + ":")
def C(s): L.append("    ; " + s)

class Q:
    def __init__(self, name, maxn):
        self.q = []; self.name = name; self.maxn = maxn
    def push(self, tag): self.q.append(tag)
    def wait(self, tag):
        if tag not in self.q: return
        idx = max(i for i, t in enumerate(self.q) if t == tag)
        n = min(len(self.q) - 1 - idx, self.maxn)
        A(f"s_waitcnt {self.name}({n})")
        self.q = self.q[len(self.q) - n:] if n else []
    def waitall(self):
        A(f"s_waitcnt {self.name}(0)"); self.q = []
    def set(self, lst): self.q = list(lst)
VM = Q("vmcnt", 63)
LG = Q("lgkmcnt", 15)
def vm(s, tag): A(s); VM.push(tag)
def lg(s, tag): A(s); LG.push(tag)

sWAVE = 3
sMASK = 4
sR, sC, sR2, sC2, sWR, sWC = 6, 7, 8, 9, 10, 11
sA, sB, sDA, sDB = 12, 13, 14, 15
pSHK, pD, pB1, pB2 = 16, 18, 20, 22
sCNT, sDELTA, sOA, sOB = 28, 29, 30, 31
sTOK, sONES, sHOFF0, sHOFF1 = 32, 33, 34, 35
sLO32, sTMP64, sSPIN, sW2M0, sSTG, sSLOT = 36, 38, 40, 41, 42, 43
GA, GB, SW2, SWS, SK, SV, SH, SOUT, SDBG, SX = 44, 48, 52, 56, 60, 64, 68, 72, 76, 80
sTS0 = 84
sXO, sYF, sYD, sJ, sCHO, sLIM = 92, 93, 94, 95, 96, 97
sXS = sSTG
sKC, sRHO, s7A, s7B = 98, 99, 100, 101
ROT = int(opts.get('rot', '1'))
def srd(r): return f"s[{r}:{r+3}]"

vLANE, vL16, vTSR = 1, 2, 3
vDA, vDB, vDR = 4, 8, 12
vRX = 16
vG, vr, vq, vZ1 = 20, 21, 22, 23
vRW = 24
vST = 26
vDv, vTOK, vH0, vPF = 28, 29, 30, 31
ACC = 32
FA, FB = 96, 112
vZ = 128
TMP = 132
GR = 200
def v(r, n=1): return f"v{r}" if n == 1 else f"v[{r}:{r+n-1}]"
def a(r, n=1): return f"a{r}" if n == 1 else f"a[{r}:{r+n-1}]"

ts_names = []
def stamp(name):
    if not TS: return
    k = len(ts_names)
    if k >= 3:
        A(f"v_writelane_b32 v{vTSR}, s{sTS0+2*((k-3)%4)}, {k-3}")
    A(f"{'s_memtime' if opts.get('cyc') else 's_memrealtime'} s[{sTS0+2*(k%4)}:{sTS0+2*(k%4)+1}]")
    ts_names.append(name)

def spin_guard(ok):
    A(f"s_cmp_eq_u32 s{sSPIN}, 0")
    A(f"s_cbranch_scc1 {ok}")
    A(f"s_sub_u32 s{sSPIN}, s{sSPIN}, 1")

def get_token(tag):
    LB(f"L_tok{tag}")
    A(f"v_readfirstlane_b32 s{sTOK}, v{vTOK}")
    A(f"s_cmp_lg_u32 s{sTOK}, 0")
    A(f"s_cbranch_scc1 L_tok_ok{tag}")
    spin_guard(f"L_tok_ok{tag}")
    A("s_sleep 2")
    A(f"buffer_load_dword v{vTOK}, v{vZ}, {srd(SDBG)}, 0 offen sc1")
    A("s_waitcnt vmcnt(0)")
    A(f"s_branch L_tok{tag}")
    LB(f"L_tok_ok{tag}")

hdr = open("recurrent_scan__ssm_conv_h3__dense_activation_squared_relu__prompt.s.ref").read().split("\n")
for line in hdr:
    if line.startswith("; @launch"):
        L.append(f"; @launch grid=({NWG},1,1) block=(256,1,1) lds={LDS_BYTES}")
    elif line.startswith(";"):
        L.append(line)
    else:
        break
L.append(f""".amdgcn_target "amdgcn-amd-amdhsa--gfx950"
.text
.globl {KNAME}
.p2align 8
.type {KNAME},@function
{KNAME}:""")

for reg, off in ((GA, 0), (GB, 56), (SK, 8), (SV, 16), (SDBG, 96), (SWS, 104), (pSHK, 24)):
    A(f"s_load_dwordx2 s[{reg}:{reg+1}], s[0:1], {off}")
A(f"s_memrealtime s[{sTMP64}:{sTMP64+1}]")
stamp("start")
A(f"s_cmp_ge_u32 s2, {NWG}")
A("s_cbranch_scc1 L_end")
A(f"s_getpc_b64 s[{sHOFF0}:{sHOFF0+1}]")
A(f"v_and_b32 v{vLANE}, 63, v0")
A(f"v_lshrrev_b32 v{TMP}, 6, v0")
A(f"v_lshrrev_b32 v{TMP+4}, 3, v{vLANE}")
A(f"v_readfirstlane_b32 s{sWAVE}, v{TMP}")
A(f"s_sub_u32 s{sJ}, s2, {NH}")
A(f"s_and_b32 s24, s{sJ}, 7")
A(f"s_lshr_b32 s25, s{sJ}, 3")
A("s_mul_i32 s26, s25, 37")
A("s_lshr_b32 s26, s26, 8")
A("s_mul_i32 s27, s26, 7")
A(f"s_sub_u32 s{sC2}, s25, s27")
A("s_lshl_b32 s27, s24, 2")
A(f"s_add_u32 s{sR2}, s27, s26")
A("s_lshr_b32 s27, s24, 1")
A("s_lshl_b32 s27, s27, 2")
A(f"s_add_u32 s{sR}, s27, s26")
A("s_and_b32 s27, s24, 1")
A("s_mul_i32 s27, s27, 7")
A(f"s_add_u32 s{sC}, s27, s{sC2}")
A(f"s_sub_u32 s27, s2, 16")
A(f"s_cmp_lt_u32 s2, {NH}")
A(f"s_cselect_b32 s{sR}, s2, s{sR}")
A(f"s_cselect_b32 s{sC}, s27, s{sC}")
for r_, sz in ((GA, 1835008), (GB, 1605632)):
    A(f"s_mov_b32 s{r_+2}, {sz}")
    A(f"s_mov_b32 s{r_+3}, 0x20000")
A(f"v_mul_u32_u24 v{TMP}, 896, v{TMP+4}")
A(f"v_and_b32 v{TMP+1}, 7, v{vLANE}")
A(f"v_lshrrev_b32 v{TMP+2}, 1, v{TMP+4}")
A(f"v_xor_b32 v{TMP+3}, v{TMP+1}, v{TMP+2}")
A(f"v_lshl_add_u32 v{vDA}, v{TMP+3}, 4, v{TMP}")
A(f"v_xor_b32 v{vDA+1}, 64, v{vDA}")
A(f"v_add_u32 v{vDA+1}, 6144, v{vDA+1}")
A(f"v_add_u32 v{vDA+2}, 12288, v{vDA}")
A(f"v_add_u32 v{vDA+3}, 12288, v{vDA+1}")
A(f"v_lshrrev_b32 v{TMP+5}, 4, v{vLANE}")
A(f"v_mul_u32_u24 v{TMP+6}, 3584, v{TMP+5}")
A(f"v_and_b32 v{TMP+7}, 15, v{vLANE}")
A(f"v_lshlrev_b32 v{TMP+5}, 2, v{TMP+5}")
A(f"v_xor_b32 v{TMP+7}, v{TMP+7}, v{TMP+5}")
A(f"v_lshl_add_u32 v{vDB}, v{TMP+7}, 4, v{TMP+6}")
for g in range(1, 4):
    A(f"v_add_u32 v{vDB+g}, {13312*g}, v{vDB}")
A(f"s_lshl_b32 s26, s{sR}, 2")
A(f"s_add_u32 s26, s26, s{sWAVE}")
A(f"s_mul_i32 s{sA}, s26, 28672")
A(f"s_mul_i32 s{sB}, s{sWAVE}, 57344")
A(f"s_lshl_b32 s26, s{sC}, 8")
A(f"s_add_u32 s{sB}, s{sB}, s26")
if opts.get("same"):
    A(f"s_cmp_lt_u32 s2, {NH}")
    A(f"s_mul_i32 s26, s{sWAVE}, 28672")
    A(f"s_cselect_b32 s{sA}, s{sA}, s26")
    A(f"s_mul_i32 s26, s{sWAVE}, 57344")
    A(f"s_cselect_b32 s{sB}, s{sB}, s26")
A(f"s_lshl_b32 s{sOA}, s{sWAVE}, 12")
A(f"s_add_u32 s{sOB}, s{sOA}, 16384")
A(f"s_movk_i32 s{sDA}, 128")
A(f"s_mov_b32 s{sDB}, {64*3584}")
A(f"s_movk_i32 s{s7A}, {-6*128}")
A(f"s_mov_b32 s{s7B}, {(-6*64*3584) & 0xffffffff}")
A(f"s_and_b32 s26, s{sR2}, 3")
A("s_lshl_b32 s26, s26, 1")
A(f"s_add_u32 s{sRHO}, s26, s{sC2}")
A(f"s_sub_u32 s26, s{sRHO}, 7")
A(f"s_cmp_ge_u32 s{sRHO}, 7")
A(f"s_cselect_b32 s{sRHO}, s26, s{sRHO}")
A(f"s_cmp_lt_u32 s2, {NH if ROT else 100000}")
A(f"s_cselect_b32 s{sRHO}, 0, s{sRHO}")
A(f"s_mov_b32 s{sKC}, s{sRHO}")
A(f"s_lshl_b32 s26, s{sRHO}, 7")
A(f"s_add_u32 s{sA}, s{sA}, s26")
A(f"s_mul_i32 s26, s{sRHO}, {64*3584}")
A(f"s_add_u32 s{sB}, s{sB}, s26")
A(f"s_mov_b32 s{sSLOT}, 0")
A(f"s_mov_b32 s{sLIM}, 131072")
for r_, sz in ((SK, 1835008), (SV, 1835008)):
    A(f"s_mov_b32 s{r_+2}, {sz}")
    A(f"s_mov_b32 s{r_+3}, 0x20000")
A(f"v_and_b32 v{TMP+2}, 1, v{TMP+2}")
A(f"v_lshlrev_b32 v{TMP+2}, 2, v{TMP+2}")
A(f"v_xor_b32 v{TMP+3}, v{TMP+1}, v{TMP+2}")
A(f"v_lshl_add_u32 v{vDR}, v{TMP+3}, 4, v{TMP}")
A(f"v_add_u32 v{vDR+1}, 6144, v{vDR}")
A(f"s_lshl_b32 s26, s{sR2}, 2")
A(f"s_add_u32 s26, s26, s{sWAVE}")
A("s_mul_i32 s27, s26, 14336")
A(f"s_lshl_b32 s5, s{sC2}, 7")
A("s_add_u32 s27, s27, s5")
A("s_sub_u32 s5, s27, 7168")
A("s_cmp_eq_u32 s26, 0")
A("s_cselect_b32 s26, 0x7fff0000, s5")
A(f"s_mul_i32 s{sSTG}, s{sWAVE}, 5120")
A(f"s_add_u32 s{sSTG}, s{sSTG}, {STG}")
A(f"s_lshl_b32 s5, s{sC2}, 9")
A(f"v_lshl_add_u32 v{TMP+6}, v{vLANE}, 3, s5")
A(f"s_mov_b32 m0, s{sSTG}")
A(f"s_cmp_lt_u32 s2, {NH}")
A("s_waitcnt lgkmcnt(0)")
A("s_cbranch_scc1 L_helper")

def dma_part(kk):
    pre = []
    if kk == 0: pre.append(f"s_add_u32 m0, s{sSLOT}, s{sOA}")
    if kk == 2: pre.append(f"s_add_u32 m0, s{sSLOT}, s{sOB}")
    vb, sr, so = (vDA, GA, sA) if kk < 2 else (vDB, GB, sB)
    ins = [f"buffer_load_dwordx4 v{vb+g}, {srd(sr)}, s{so} offen offset:{1024*g} lds" for g in (2 * (kk & 1), 2 * (kk & 1) + 1)]
    post = []
    if kk == 1:
        post += [f"s_add_u32 s{sKC}, s{sKC}, 1", f"s_cmp_eq_u32 s{sKC}, 7", f"s_cselect_b32 s{sKC}, 0, s{sKC}",
                 f"s_cselect_b32 s5, s{s7A}, s{sDA}", f"s_add_u32 s{sA}, s{sA}, s5"]
    if kk == 3:
        post += [f"s_cmp_eq_u32 s{sKC}, 0", f"s_cselect_b32 s5, s{s7B}, s{sDB}", f"s_add_u32 s{sB}, s{sB}, s5",
                 f"s_add_u32 s{sSLOT}, s{sSLOT}, 32768",
                 f"s_cmp_eq_u32 s{sSLOT}, s{sLIM}", f"s_cselect_b32 s{sSLOT}, 0, s{sSLOT}"]
    return pre, ins, post
def dma_item(tag):
    for kk in range(4):
        pre, ins, post = dma_part(kk)
        for s_ in pre: A(s_); A("s_nop 0")
        for s_ in ins: vm(s_, tag)
        for s_ in post: A(s_)

def common_consts():
    for r_, sz in ((SDBG, 256), (SWS, WS_SIZE)):
        A(f"s_mov_b32 s{r_+2}, {sz}")
        A(f"s_mov_b32 s{r_+3}, 0x20000")
    for i in range(4): A(f"v_mov_b32 v{vZ+i}, 0")
    A(f"s_mov_b32 s{sMASK}, 0xffff0000")
    A(f"s_mov_b32 s{sSPIN}, 200000")
    A(f"v_lshlrev_b32 v{vL16}, 4, v{vLANE}")

vm(f"buffer_load_dwordx4 v{vDR}, {srd(SK)}, s26 offen lds", "kv")
A(f"s_add_u32 m0, s{sSTG}, 1024")
vm(f"global_load_dwordx2 v[{TMP+4}:{TMP+5}], v{TMP+6}, s[{pSHK}:{pSHK+1}]", "kv")
vm(f"buffer_load_dwordx4 v{vDR}, {srd(SK)}, s27 offen lds", "kv")
vm(f"buffer_load_dwordx4 v{vDR+1}, {srd(SK)}, s27 offen offset:1024 lds", "kv")
A(f"s_add_u32 m0, s{sSTG}, 3072")
for reg, off in ((pD, 40), (SW2, 72), (SH, 32), (pB2, 80), (SOUT, 88), (SX, 0)):
    A(f"s_load_dwordx2 s[{reg}:{reg+1}], s[0:1], {off}")
vm(f"buffer_load_dwordx4 v{vDR}, {srd(SV)}, s27 offen lds", "kv")
vm(f"buffer_load_dwordx4 v{vDR+1}, {srd(SV)}, s27 offen offset:1024 lds", "kv")
dma_item("c0")
stamp("c0iss")
common_consts()
A(f"s_lshl_b32 s5, s{sC2}, 7")
A(f"v_lshl_add_u32 v{TMP}, v{vLANE}, 1, s5")
A("s_waitcnt lgkmcnt(0)")
vm(f"global_load_ushort v{vDv}, v{TMP}, s[{pD}:{pD+1}]", "sm")
A(f"v_lshlrev_b32 v{TMP}, 4, v0")
for i in range(4):
    vm(f"global_load_dwordx4 {v(GR,4)}, v{TMP}, s[{sHOFF0}:{sHOFF0+1}]", "pf")
    if i < 3: A(f"v_add_u32 v{TMP}, 4096, v{TMP}")
for r_, sz in ((SW2, 1605632), (SH, 1835008), (SOUT, 1835008), (SX, 1835008)):
    A(f"s_mov_b32 s{r_+2}, {sz}")
    A(f"s_mov_b32 s{r_+3}, 0x20000")
A(f"v_add_u32 v{vDR+2}, 12288, v{vDR}")
A(f"v_add_u32 v{vDR+3}, 18432, v{vDR}")
A(f"s_lshr_b32 s{sWR}, s{sWAVE}, 1")
A(f"s_and_b32 s{sWC}, s{sWAVE}, 1")
A(f"s_mov_b32 s{sLO32}, -1")
A(f"s_mov_b32 s{sLO32+1}, 0")
A(f"s_lshl_b32 s{sW2M0}, s{sWAVE}, 13")
A(f"v_lshrrev_b32 v{vG}, 4, v{vLANE}")
A(f"v_bfe_u32 v{vr}, v{vLANE}, 2, 2")
A(f"v_and_b32 v{vq}, 3, v{vLANE}")
A(f"v_mov_b32 v{vZ1}, 0")
A(f"s_lshl_b32 s{sCHO}, s{sJ}, 1")
A(f"s_add_u32 s{sCHO}, s{sCHO}, s{sWR}")
A(f"s_lshl_b32 s{sCHO}, s{sCHO}, 12")
A(f"v_lshlrev_b32 v{TMP}, 1, v{vG}")
A(f"v_lshrrev_b32 v{TMP+1}, 1, v{vq}")
A(f"v_add_u32 v{TMP}, v{TMP}, v{TMP+1}")
A(f"v_lshrrev_b32 v{TMP+1}, 1, v{vr}")
A(f"v_lshlrev_b32 v{TMP+1}, 2, v{TMP+1}")
A(f"v_xor_b32 v{TMP}, v{TMP}, v{TMP+1}")
A(f"v_lshlrev_b32 v{TMP}, 4, v{TMP}")
A(f"v_lshl_add_u32 v{TMP}, v{vr}, 7, v{TMP}")
A(f"v_and_b32 v{TMP+1}, 1, v{vq}")
A(f"v_lshl_add_u32 v{TMP}, v{TMP+1}, 3, v{TMP}")
vKVR = TMP + 11
A(f"v_add_u32 v{vKVR}, s{sSTG}, v{TMP}")
for i in range(4):
    A(f"v_mfma_f32_32x32x16_bf16 {v(ACC+16*i,16)}, {v(vZ,4)}, {v(vZ,4)}, 0")

C("KV phase")
VM.wait("kv")
stamp("kvarr")
P = TMP + 12
VV = TMP + 22
for a_ in range(1, 6):
    A(f"ds_read_b64_tr_b16 {v(P+2*(a_-1),2)}, v{vKVR} offset:{512*a_}")
for a_ in range(4):
    A(f"ds_read_b64_tr_b16 {v(VV+2*a_,2)}, v{vKVR} offset:{3072+512*a_}")
kvc = []
K = kvc.append
S0, S1 = TMP + 4, TMP + 5
Wa, Wb, Wc, Wd, We = TMP, TMP + 1, TMP + 2, TMP + 3, TMP + 6
K(f"v_alignbit_b32 v{Wa}, v{S0}, v{S0}, 16")
K(f"v_alignbit_b32 v{Wb}, v{S1}, v{S1}, 16")
K(f"v_and_b32 v{Wc}, 0xffff, v{S0}")
K(f"v_and_b32 v{We}, s{sMASK}, v{S1}")
K(f"v_bfi_b32 v{Wd}, s{sMASK}, v{S0}, v{S1}")
KS = TMP + 30
K("s_waitcnt lgkmcnt(4)")
for tau in range(16):
    i = tau // 2 + 2
    K(f"v_dot2_f32_bf16 v{KS+tau}, v{P+i}, v{Wa if tau & 1 else Wc}, 0")
for tau in range(16):
    i = tau // 2 + 2
    K(f"v_dot2c_f32_bf16 v{KS+tau}, v{P+i-1}, v{Wb if tau & 1 else Wd}")
for tau in range(0, 16, 2):
    i = tau // 2 + 2
    K(f"v_dot2c_f32_bf16 v{KS+tau}, v{P+i-2}, v{We}")
K("s_waitcnt lgkmcnt(0)")
UV = TMP + 46
for i in range(8):
    K(f"v_lshlrev_b32 v{UV+2*i}, 16, v{VV+i}")
    K(f"v_and_b32 v{UV+2*i+1}, s{sMASK}, v{VV+i}")
for i in range(8):
    K(f"v_pk_mul_f32 {v(KS+2*i,2)}, {v(KS+2*i,2)}, {v(UV+2*i,2)}")
OUTR = TMP + 12
assert OUTR % 4 == 0
for p in range(4):
    for h in range(2):
        K(f"v_cvt_pk_bf16_f32 v{OUTR+2*p+h}, v{KS+8*h+p}, v{KS+8*h+4+p}")
K(f"v_lshl_add_u32 v{TMP}, v{vLANE}, 5, s{sSTG}")
K(f"ds_write_b128 v{TMP}, {v(OUTR,4)}")
K(f"ds_write_b128 v{TMP}, {v(OUTR+4,4)} offset:16")
K(f"v_and_b32 v{TMP+1}, 31, v{vLANE}")
K(f"v_lshrrev_b32 v{TMP+2}, 5, v{vLANE}")
K(f"v_bfe_u32 v{TMP+3}, v{vLANE}, 1, 3")
K(f"v_xor_b32 v{TMP+2}, v{TMP+2}, v{TMP+3}")
K(f"v_lshlrev_b32 v{TMP+2}, 4, v{TMP+2}")
K(f"v_lshl_add_u32 v{TMP+1}, v{TMP+1}, 7, v{TMP+2}")
K(f"s_lshl_b32 s26, s{sWR}, 13")
K(f"v_add_u32 v{vRX}, s26, v{TMP+1}")
for s in range(1, 4):
    K(f"v_xor_b32 v{vRX+s}, {32*s}, v{vRX}")
K(f"s_lshl_b32 s26, s{sWC}, 1")
K(f"v_xor_b32 v{TMP+1}, s26, v{vr}")
K(f"v_lshlrev_b32 v{TMP+1}, 6, v{TMP+1}")
K(f"v_lshl_add_u32 v{TMP+1}, v{vr}, 8, v{TMP+1}")
K(f"v_lshrrev_b32 v{TMP+2}, 1, v{vG}")
K(f"v_lshl_add_u32 v{TMP+1}, v{TMP+2}, 11, v{TMP+1}")
K(f"v_and_b32 v{TMP+2}, 1, v{vG}")
K(f"v_lshl_add_u32 v{TMP+1}, v{TMP+2}, 5, v{TMP+1}")
K(f"v_lshl_add_u32 v{TMP+1}, v{vq}, 3, v{TMP+1}")
K(f"v_add_u32 v{vRW}, 16384, v{TMP+1}")
K(f"v_xor_b32 v{vRW+1}, 64, v{vRW}")
spr = []
for tag in ("c1", "c2"):
    for kk in range(4):
        pre, ins_, post_ = dma_part(kk)
        spr.append((pre, ins_[0], [], tag)); spr.append(([], ins_[1], post_, tag))
step = max(1, len(kvc) // 17)
for i, s_ in enumerate(kvc):
    do = spr and i % step == step - 1
    if do:
        pre, ins_, post_, tag = spr.pop(0)
        for p_ in pre: A(p_)
    A(s_)
    if do:
        vm(ins_, tag)
        for p_ in post_: A(p_)
assert not spr
VM.wait("sm")
A(f"v_lshlrev_b32 v{UV}, 16, v{vDv}")
A(f"v_lshlrev_b32 v{UV+1}, 16, v{vDv}")
A(f"s_lshl_b32 s26, s{sWAVE}, 11")
A(f"s_add_u32 s26, s26, {KVD}")
A(f"v_lshl_add_u32 v{TMP}, v{vLANE}, 5, s26")
for i in range(8): A(f"v_pk_mul_f32 {v(KS+2*i,2)}, {v(KS+2*i,2)}, {v(UV,2)}")
for i in range(8): A(f"v_cvt_pk_bf16_f32 v{OUTR+8+i}, v{KS+2*i}, v{KS+2*i+1}")
A(f"ds_write_b128 v{TMP}, {v(OUTR+8,4)}")
A(f"ds_write_b128 v{TMP}, {v(OUTR+12,4)} offset:16")
A(f"v_bfe_u32 v{TMP}, v{vLANE}, 1, 2")
A(f"v_mul_u32_u24 v{TMP}, 5120, v{TMP}")
A(f"v_lshrrev_b32 v{TMP+1}, 3, v{vLANE}")
A(f"v_lshl_add_u32 v{TMP}, v{TMP+1}, 5, v{TMP}")
A(f"v_and_b32 v{TMP+2}, 1, v{vLANE}")
A(f"v_lshl_add_u32 v{TMP}, v{TMP+2}, 4, v{TMP}")
A(f"s_lshl_b32 s26, s{sWAVE}, 9")
A(f"s_add_u32 s26, s26, {STG}")
A(f"v_add_u32 v{TMP}, s26, v{TMP}")
A(f"v_and_b32 v{TMP+2}, 7, v{vLANE}")
A(f"v_lshlrev_b32 v{TMP+2}, 4, v{TMP+2}")
A(f"v_lshl_add_u32 v{TMP+2}, v{TMP+1}, 12, v{TMP+2}")
A(f"s_lshl_b32 s26, s{sC2}, 2")
A(f"s_add_u32 s26, s26, s{sWAVE}")
A("s_lshl_b32 s26, s26, 16")
A(f"s_lshl_b32 s27, s{sR2}, 7")
A("s_add_u32 s26, s26, s27")
A(f"s_add_u32 s26, s26, {WS_KVT}")
A("s_add_u32 s27, s26, 32768")

C("GEMM1")
def g1_reads(s, F):
    return [f"ds_read_b128 {v(F,4)}, v{vRX+s}",
            f"ds_read_b64_tr_b16 {v(F+8,2)}, v{vRW} offset:{4096*s}",
            f"ds_read_b64_tr_b16 {v(F+10,2)}, v{vRW} offset:{4096*s+1024}",
            f"ds_read_b128 {v(F+4,4)}, v{vRX+s} offset:4096",
            f"ds_read_b64_tr_b16 {v(F+12,2)}, v{vRW+1} offset:{4096*s}",
            f"ds_read_b64_tr_b16 {v(F+14,2)}, v{vRW+1} offset:{4096*s+1024}"]
def g1_mf(F):
    return [f"v_mfma_f32_32x32x16_bf16 {v(ACC+16*(2*jf+tt),16)}, {v(F+8+4*jf,4)}, {v(F+4*tt,4)}, {v(ACC+16*(2*jf+tt),16)}"
            for jf, tt in ((0, 0), (0, 1), (1, 0), (1, 1))]
G1X = opts.get("g1x", "")
def g1_step(F, Fn, sn, kk):
    pre, ins, post = dma_part(kk)
    M = g1_mf(F); R = g1_reads(sn, Fn)
    if "nodma" in G1X: ins = ["s_nop 0", "s_nop 0"]
    if "noread" in G1X: R = ["s_nop 0"] * 6
    if "nomfma" in G1X: M = ["s_nop 0"] * 4
    seq = ["s_waitcnt lgkmcnt(3)", M[0]] + R[:3] + ["s_waitcnt lgkmcnt(5)", M[1]] + R[3:] + pre + \
          ["s_waitcnt lgkmcnt(6)", M[2], ins[0], M[3], ins[1]] + post
    for s_ in seq: A(s_)

A("s_waitcnt lgkmcnt(0)")
A("s_barrier")
stamp("g1start")
A(f"ds_read_b128 {v(OUTR,4)}, v{TMP}")
A(f"ds_read_b128 {v(OUTR+4,4)}, v{TMP} offset:256")
for s_ in g1_reads(0, FA): A(s_)
A(f"s_mov_b32 s{sCNT}, 0")
A("s_waitcnt lgkmcnt(6)")
A(f"buffer_store_dwordx4 {v(OUTR,4)}, v{TMP+2}, {srd(SWS)}, s26 offen sc1")
A(f"buffer_store_dwordx4 {v(OUTR+4,4)}, v{TMP+2}, {srd(SWS)}, s27 offen sc1")
A(f"buffer_load_dword v{vTOK}, v{vZ}, {srd(SDBG)}, 0 offen sc1")
if "align" in G1X: L.append(".p2align 6")
LB("L_g1")
g1_step(FA, FB, 1, 0)
g1_step(FB, FA, 2, 1)
g1_step(FA, FB, 3, 2)
pre, ins, post = dma_part(3)
M = g1_mf(FB); R = g1_reads(0, FA)
if "nodma" in G1X: ins = ["s_nop 0", "s_nop 0"]
if "noread" in G1X: R = ["s_nop 0"] * 6
if "nomfma" in G1X: M = ["s_nop 0"] * 4
A(f"s_cmp_eq_u32 s{sCNT}, 3")
A(f"s_cselect_b32 s{sDELTA}, -3, 1")
A(f"s_lshl_b32 s{sDELTA}, s{sDELTA}, 15")
A(f"s_cmp_eq_u32 s{sCNT}, 6")
A("s_waitcnt lgkmcnt(0)")
A(M[0])
A("s_cbranch_scc1 L_g1_last")
for r_ in (vRX, vRW, vRW + 1):
    A(f"v_add_u32 v{r_}, s{sDELTA}, v{r_}")
if False:
    TI = 's_memtime' if opts.get('cyc') else 's_memrealtime'
    A(f"s_lshl_b32 s5, s{sCNT}, 1")
    A("s_add_u32 s5, s5, 30")
    A(f"v_cmp_eq_u32 vcc, s5, v{vLANE}")
    A(f"v_mov_b32 v{GR+20}, s88")
    A("s_add_u32 s5, s5, 1")
    A(f"v_cndmask_b32 v{vTSR}, v{vTSR}, v{GR+20}, vcc")
    A(f"v_cmp_eq_u32 vcc, s5, v{vLANE}")
    A(f"v_mov_b32 v{GR+20}, s100")
    A("s_nop 0")
    A(f"v_cndmask_b32 v{vTSR}, v{vTSR}, v{GR+20}, vcc")
    A(f"{TI} s[88:89]")
A(f"s_waitcnt vmcnt({G1WAIT})")
if "nobar" not in G1X: A("s_barrier")
if False:
    A(f"{TI} s[100:101]")
for s_ in R[:3]: A(s_)
A(M[1])
for s_ in R[3:]: A(s_)
for r_ in (vRX + 1, vRX + 2, vRX + 3):
    A(f"v_add_u32 v{r_}, s{sDELTA}, v{r_}")
A(M[2]); A(ins[0]); A(M[3]); A(ins[1])
for s_ in post: A(s_)
A(f"s_add_u32 s{sCNT}, s{sCNT}, 1")
A(f"s_cmp_eq_u32 s{sCNT}, 3")
A("s_cbranch_scc1 L_sp3")
A(f"s_cmp_eq_u32 s{sCNT}, 4")
A("s_cbranch_scc1 L_sp4")
A(f"s_cmp_eq_u32 s{sCNT}, 6")
A("s_cbranch_scc1 L_sp6")
A(f"s_cmp_lg_u32 s{sCNT}, 2")
A("s_cbranch_scc1 L_g1")
get_token("m")
A(f"s_cmp_lg_u32 s{sWAVE}, 0")
A("s_cbranch_scc1 L_g1")
A(f"s_lshl_b32 s26, s{sC2}, 7")
A(f"s_lshl_b32 s27, s{sR2}, 2")
A("s_add_u32 s26, s26, s27")
A(f"buffer_store_dword v{vTOK}, v{vZ}, {srd(SWS)}, s26 offen sc1")
A("s_branch L_g1")
LB("L_sp3")
A(f"s_mul_i32 s25, s{sWR}, 4352")
A(f"s_lshl_b32 s26, s{sWC}, 11")
A("s_add_u32 s27, s25, s26")
A(f"s_add_u32 m0, s27, {HL+256}")
A(f"s_add_u32 s26, s26, s{sCHO}")
A(f"buffer_load_dwordx4 v{vL16}, {srd(SH)}, s26 offen lds")
A(f"buffer_load_dwordx4 v{vL16}, {srd(SH)}, s26 offen offset:1024 lds")
A(f"s_mul_i32 s24, s{sWR}, 4224")
A(f"s_add_u32 s25, s25, {HL}")
A(f"s_add_u32 s24, s24, {KVL}")
A(f"s_cmp_eq_u32 s{sWC}, 0")
A("s_cselect_b32 s24, s25, s24")
A("s_cselect_b32 s25, 0xff00, 0")
A("s_or_b32 s25, s25, 0xff")
A(f"v_add_u32 v{TMP}, s24, v{vL16}")
A(f"s_mul_i32 s24, s{sWR}, 544")
A(f"s_add_u32 s24, s24, {CARRY}")
A(f"v_mov_b32 v{TMP+1}, s24")
A("s_mov_b32 exec_lo, s25")
A("s_mov_b32 exec_hi, 0")
A(f"ds_write_b128 v{TMP}, {v(vZ,4)}")
A(f"ds_write_b128 v{TMP+1}, {v(vZ,4)}")
A("s_mov_b64 exec, -1")
A("s_waitcnt lgkmcnt(0)")
A("s_branch L_g1")
LB("L_sp4")
for d_ in (GA, GB):
    A(f"s_mov_b64 s[{d_}:{d_+1}], s[{SW2}:{SW2+1}]")
    A(f"s_mov_b32 s{d_+2}, 1605632")
for g in range(4):
    A(f"v_mov_b32 v{vDA+g}, v{vDR+g}")
    A(f"v_mov_b32 v{vDB+g}, v{vDR+g}")
A(f"s_mul_i32 s{sA}, s{sWAVE}, 401408")
A(f"s_lshl_b32 s26, s{sC2}, 7")
if opts.get("same"): A("s_mov_b32 s26, 0")
A(f"s_add_u32 s{sA}, s{sA}, s26")
A(f"s_mul_i32 s26, s{sRHO}, {64*896}")
A(f"s_add_u32 s{sA}, s{sA}, s26")
A(f"s_add_u32 s{sB}, s{sA}, {32*896}")
A(f"s_mov_b32 s{sDA}, {64*896}")
A(f"s_mov_b32 s{sDB}, {64*896}")
A(f"s_mov_b32 s{s7A}, {(-6*64*896) & 0xffffffff}")
A(f"s_mov_b32 s{s7B}, {(-6*64*896) & 0xffffffff}")
A(f"s_mov_b32 s{sOA}, s{sW2M0}")
A(f"s_add_u32 s{sOB}, s{sW2M0}, 4096")
A("s_branch L_g1")
LB("L_sp6")
vGO = TMP
def granule_loads():
    A(f"buffer_load_dwordx4 {v(GR,4)}, v{vGO}, {srd(SWS)}, s24 offen sc1")
    A(f"buffer_load_dwordx4 {v(GR+4,4)}, v{vGO}, {srd(SWS)}, s24 offen offset:512 sc1")
    A(f"buffer_load_dwordx4 {v(GR+8,4)}, v{vGO}, {srd(SWS)}, s25 offen sc1")
    A(f"buffer_load_dwordx4 {v(GR+12,4)}, v{vGO}, {srd(SWS)}, s25 offen offset:512 sc1")
    A(f"buffer_load_dwordx4 {v(GR+16,4)}, v{vGO}, {srd(SWS)}, s26 offen sc1")
A(f"v_and_b32 v{vGO}, 31, v{vLANE}")
A(f"v_lshlrev_b32 v{vGO}, 4, v{vGO}")
A(f"s_lshl_b32 s24, s{sR}, 1")
A(f"s_add_u32 s24, s24, s{sWR}")
A("s_lshl_b32 s24, s24, 10")
A(f"s_add_u32 s24, s24, {WS_STAT}")
A(f"s_lshl_b32 s25, s{sC}, 1")
A(f"s_add_u32 s25, s25, s{sWC}")
A("s_lshl_b32 s25, s25, 10")
A(f"s_add_u32 s25, s25, {WS_CS}")
A(f"s_lshl_b32 s26, s{sR2}, 1")
A(f"s_add_u32 s26, s26, s{sWC}")
A("s_lshl_b32 s26, s26, 9")
A(f"s_add_u32 s26, s26, {WS_STAT}")
granule_loads()
vKFo, vKF = TMP + 1, TMP + 2
A(f"s_lshr_b32 s27, s{sJ}, 5")
A("s_lshl_b32 s27, s27, 7")
A(f"v_lshrrev_b32 v{vKFo}, 2, v{vGO}")
A(f"buffer_load_dword v{vKF}, v{vKFo}, {srd(SWS)}, s27 offen sc1")
A(f"s_mov_b32 s{sLIM}, 98304")
A("s_branch L_g1")
LB("L_g1_last")
A(M[1]); A(M[2]); A(ins[0]); A(M[3]); A(ins[1])
for s_ in post: A(s_)
VM.set(["w0"] * 8 + ["w1"] * 8 + ["gr"] * 6 + ["w2"] * 8)
LG.set([])
stamp("g1done")

C("aug")
VM.wait("gr")
LB("L_gr")
A(f"v_cmp_ne_u32 vcc, s{sTOK}, v{GR+3}")
for k_ in range(1, 5):
    A(f"v_cmp_ne_u32 s[{sTMP64}:{sTMP64+1}], s{sTOK}, v{GR+4*k_+3}")
    A(f"s_or_b64 vcc, vcc, s[{sTMP64}:{sTMP64+1}]")
A("s_cmp_eq_u64 vcc, 0")
A("s_cbranch_scc1 L_gr_ok")
spin_guard("L_gr_ok")
granule_loads()
A("s_waitcnt vmcnt(0)")
A("s_branch L_gr")
LB("L_gr_ok")
GX, GW = GR, GR + 8
for r_ in (GX, GX + 1, GX + 4, GX + 5):
    A(f"v_cndmask_b32 v{r_}, 0, v{r_}, s[{sLO32}:{sLO32+1}]")
for r_ in (GX + 2, GX + 3, GX + 6, GX + 7, GW + 2, GW + 3, GW + 6, GW + 7):
    A(f"v_mov_b32 v{r_}, 0")
A(f"v_mov_b32 v{vST}, v{GR+16}")
A(f"v_mov_b32 v{vST+1}, v{GR+17}")
for jf, tt in ((0, 0), (0, 1), (1, 0), (1, 1)):
    A(f"v_mfma_f32_32x32x16_bf16 {v(ACC+16*(2*jf+tt),16)}, {v(GW+4*jf,4)}, {v(GX+4*tt,4)}, {v(ACC+16*(2*jf+tt),16)}")
def kv_dma():
    A(f"s_mul_i32 s25, s{sWR}, 4224")
    A(f"s_lshl_b32 s26, s{sWC}, 11")
    A("s_add_u32 s25, s25, s26")
    A(f"s_add_u32 m0, s25, {KVL+128}")
    A(f"s_add_u32 s24, s{sCHO}, s26")
    A(f"s_add_u32 s24, s24, {WS_KVT}")
    A(f"buffer_load_dwordx4 v{vL16}, {srd(SWS)}, s24 offen sc1 lds")
    A(f"buffer_load_dwordx4 v{vL16}, {srd(SWS)}, s24 offen offset:1024 sc1 lds")
A(f"v_cmp_ne_u32 vcc, s{sTOK}, v{vKF}")
A(f"s_mov_b32 s{sDELTA}, 0")
A("s_cbranch_vccnz L_kv_late")
kv_dma()
A(f"s_mov_b32 s{sDELTA}, 1")
LB("L_kv_late")
A(f"s_lshl_b32 s24, s{sR}, 1")
A(f"s_add_u32 s24, s24, s{sWR}")
A("s_mul_i32 s24, s24, 229376")
A(f"s_lshl_b32 s26, s{sC}, 1")
A(f"s_add_u32 s26, s26, s{sWC}")
A("s_lshl_b32 s26, s26, 12")
A("s_add_u32 s24, s24, s26")
A(f"s_add_u32 s{sHOFF0}, s24, {WS_H}")
A(f"s_add_u32 s{sHOFF1}, s{sHOFF0}, 114688")
stamp("aug")
C("H epilogue")
for n, (jf, tt) in enumerate(((0, 0), (0, 1), (1, 0), (1, 1))):
    b = ACC + 16 * (2 * jf + tt)
    for i in range(16): A(f"v_max_f32 v{b+i}, 0, v{b+i}")
    for i in range(8): A(f"v_pk_mul_f32 {v(b+2*i,2)}, {v(b+2*i,2)}, {v(b+2*i,2)}")
    o = 160 + 8 * n
    for i in range(8): A(f"v_cvt_pk_bf16_f32 v{o+i}, v{b+2*i}, v{b+2*i+1}")
    so = sHOFF0 if tt == 0 else sHOFF1
    vm(f"buffer_store_dwordx4 {v(o,4)}, v{vL16}, {srd(SWS)}, s{so} offen offset:{2048*jf} sc1", "hst")
    vm(f"buffer_store_dwordx4 {v(o+4,4)}, v{vL16}, {srd(SWS)}, s{so} offen offset:{2048*jf+1024} sc1", "hst")
stamp("hstiss")
T = TMP + 4
vPW = vRX
A(f"v_and_b32 v{T}, 1, v{vG}")
A(f"v_lshlrev_b32 v{T}, 1, v{T}")
A(f"v_lshrrev_b32 v{T+1}, 1, v{vq}")
A(f"v_add_u32 v{T}, v{T}, v{T+1}")
A(f"v_lshrrev_b32 v{T+1}, 1, v{vr}")
A(f"v_xor_b32 v{T+1}, s{sWR}, v{T+1}")
A(f"v_lshl_add_u32 v{T}, v{T+1}, 2, v{T}")
A(f"v_lshlrev_b32 v{T}, 4, v{T}")
A(f"v_lshl_add_u32 v{T}, v{vr}, 7, v{T}")
A(f"v_lshrrev_b32 v{T+1}, 1, v{vG}")
A(f"v_lshl_add_u32 v{T}, v{T+1}, 9, v{T}")
A(f"v_and_b32 v{T+1}, 1, v{vq}")
A(f"v_lshl_add_u32 v{T}, v{T+1}, 3, v{T}")
A(f"v_add_u32 v{vPW}, s{sW2M0}, v{T}")
A(f"v_xor_b32 v{vPW+1}, 64, v{vPW}")
A(f"v_add_u32 v{vPW+2}, 65536, v{vPW}")
A(f"v_add_u32 v{vPW+3}, 65536, v{vPW+1}")
W2SLOT = [3, 0, 1, 2, 0, 1, 2]
def pump(j):
    VM.wait(f"w{j}")
    sl = W2SLOT[j]
    for s in range(4):
        for jd in range(2):
            for e in range(2):
                lg(f"ds_read_b64_tr_b16 {a(32*j+8*s+4*jd+2*e,2)}, v{vPW+jd+2*(sl>>1)} offset:{32768*(sl&1)+2048*s+1024*e}", f"p{j}")
pump(0); pump(1); pump(2)
CA = 96
CBF = 192
vCA0, vCA1, vCB, vYW, vCW = 12, 13, 14, 15, 24
CT = 204
A(f"v_lshl_add_u32 v{CT}, v{vG}, 1, v{vr}")
A(f"v_lshlrev_b32 v{CT}, 5, v{CT}")
A(f"v_lshl_add_u32 v{CT}, v{vq}, 3, v{CT}")
A(f"s_mul_i32 s24, s{sWR}, 4224")
A(f"s_add_u32 s24, s24, {KVL+128-96}")
A(f"v_add_u32 v{vCA0}, s24, v{CT}")
A(f"v_add_u32 v{vCA1}, 2048, v{vCA0}")
A(f"v_sub_u32 v{CT}, v{vq}, v{vr}")
A(f"v_lshlrev_b32 v{CT}, 3, v{CT}")
A(f"v_lshlrev_b32 v{CT+1}, 6, v{vG}")
A(f"v_sub_u32 v{CT}, v{CT}, v{CT+1}")
A(f"s_mul_i32 s24, s{sWR}, 4352")
A(f"s_lshl_b32 s25, s{sWC}, 7")
A("s_add_u32 s24, s24, s25")
A(f"s_add_u32 s24, s24, {HL+256+96-32}")
A(f"v_add_u32 v{vCB}, s24, v{CT}")
A(f"s_lshl_b32 s24, s{sWR}, 13")
A(f"s_lshl_b32 s25, s{sWC}, 8")
A("s_add_u32 s25, s25, s24")
A(f"s_add_u32 s25, s25, {YL0}")
A(f"v_lshl_add_u32 v{vYW}, v{vLANE}, 2, s25")
A(f"v_and_b32 v{CT}, 1, v{vG}")
A(f"v_lshlrev_b32 v{CT}, 1, v{CT}")
A(f"v_lshrrev_b32 v{CT+1}, 1, v{vG}")
A(f"v_add_u32 v{CT}, v{CT}, v{CT+1}")
A(f"v_lshl_add_u32 v{CT}, v{vr}, 2, v{CT}")
A(f"s_mul_i32 s26, s{sWR}, 544")
A(f"s_lshl_b32 s25, s{sWC}, 4")
A("s_add_u32 s25, s25, s26")
A(f"s_add_u32 s25, s25, {CARRY+16}")
A(f"v_lshl_add_u32 v{vCW}, v{CT}, 5, s25")
A(f"s_lshl_b32 s24, s{sR}, 1")
A(f"s_add_u32 s24, s24, s{sWR}")
A("s_lshl_b32 s24, s24, 7")
A(f"s_lshl_b32 s25, s{sC}, 1")
A(f"s_add_u32 s25, s25, s{sWC}")
A("s_lshl_b32 s25, s25, 2")
A("s_add_u32 s24, s24, s25")
A(f"s_add_u32 s24, s24, {WS_HF}")
VM.wait("hst")
vm(f"buffer_store_dword v{vTOK}, v{vZ1}, {srd(SWS)}, s24 offen sc1", "hf")
stamp("hflag")
A(f"s_cmp_eq_u32 s{sDELTA}, 1")
A("s_cbranch_scc1 L_kv_done")
LB("L_kvf")
A(f"buffer_load_dword v{vKF}, v{vKFo}, {srd(SWS)}, s27 offen sc1")
A("s_waitcnt vmcnt(0)")
A(f"v_cmp_ne_u32 vcc, s{sTOK}, v{vKF}")
A("s_cbranch_vccz L_kvf_ok")
spin_guard("L_kvf_ok")
A("s_branch L_kvf")
LB("L_kvf_ok")
kv_dma()
A("s_waitcnt vmcnt(0)")
LB("L_kv_done")

C("conv")
LG.waitall()
A("s_barrier")
stamp("convstart")
def cb_read(w2):
    b = CBF + 4 * (w2 % 3)
    lg(f"ds_read_b64_tr_b16 {v(b,2)}, v{vCB} offset:{256*w2+32}", f"b{w2}")
    lg(f"ds_read_b64_tr_b16 {v(b+2,2)}, v{vCB} offset:{256*w2}", f"b{w2}")
sprinkle = []
for j in (3, 4, 5, 6):
    for kk in range(4):
        pre, ins_, post_ = dma_part(kk)
        sprinkle.append((pre, ins_[0], [], f"w{j}")); sprinkle.append(([], ins_[1], post_, f"w{j}"))
cb_read(0)
for sg in range(16):
    base = vCA0 if sg < 8 else vCA1
    o = 32 * (sg % 8)
    lg(f"ds_read2_b64 {v(CA+4*sg,4)}, v{base} offset0:{o} offset1:{o+4}", f"a{sg}")
    if sg == 3: cb_read(1)
nm = 0
pumped3 = False
for w2 in range(16):
    LG.wait(f"b{w2}")
    b = CBF + 4 * (w2 % 3)
    for sg in range(16 - w2):
        if w2 == 0: LG.wait(f"a{sg}")
        d = ACC + 4 * (sg + w2)
        src = "0" if w2 == 0 else v(d, 4)
        do = sprinkle and nm % CONVD == CONVD - 1
        if do:
            if len(sprinkle) == 8: LG.wait("p3")
            pre, ins_, post_, tag = sprinkle.pop(0)
            for s_ in pre: A(s_)
        A(f"v_mfma_f32_16x16x32_bf16 {v(d,4)}, {v(CA+4*sg,4)}, {v(b,4)}, {src}")
        if do:
            vm(ins_, tag)
            for s_ in post_: A(s_)
            if len(sprinkle) == 11 and not pumped3:
                pump(3); pumped3 = True
        nm += 1
        if w2 == 0 and sg == 15: cb_read(2)
        elif w2 > 0 and sg == 0 and w2 + 2 < 16: cb_read(w2 + 2)
assert not sprinkle and pumped3
stamp("convmfma")
vHFo, vHF = 9, 10
sHFA = sA
A(f"s_lshl_b32 s{sHFA}, s{sR2}, 7")
A(f"s_mul_i32 s25, s{sWAVE}, 28")
A(f"s_add_u32 s{sHFA}, s{sHFA}, s25")
A(f"s_add_u32 s{sHFA}, s{sHFA}, {WS_HF}")
A(f"v_min_u32 v{vHFo}, 6, v{vLANE}")
A(f"v_lshlrev_b32 v{vHFo}, 2, v{vHFo}")
vm(f"buffer_load_dword v{vHF}, v{vHFo}, {srd(SWS)}, s{sHFA} offen sc1", "hfl")
A("s_nop 0")
DPP = "wave_shr:1 row_mask:0xf bank_mask:0xf bound_ctrl:0"
for lvl in (2, 1, 0):
    for t2 in range(16):
        d = ACC + 4 * t2
        A(f"v_add_f32_dpp v{d+lvl}, v{d+lvl+1}, v{d+lvl} {DPP}")
for t2 in range(16):
    lg(f"ds_write_b32 v{vYW}, v{ACC+4*t2} offset:{512*t2}", "yw")
X = lambda t2, lv: ACC + 4 * t2 + lv
for k_ in range(8):
    for lv in (1, 2, 3): A(f"v_permlane32_swap_b32 v{X(2*k_,lv)}, v{X(2*k_+1,lv)}")
for m_ in range(4):
    for lv in (1, 2, 3): A(f"v_permlane16_swap_b32 v{X(4*m_+1,lv)}, v{X(4*m_+3,lv)}")
for m_ in range(3):
    for lv in (1, 2, 3):
        A(f"v_mov_b32_dpp v{X(15,lv)}, v{X(4*m_+3,lv)} row_shl:{12-4*m_} row_mask:0xf bank_mask:{1<<m_:#x}")
A("s_mov_b32 exec_lo, 0x88888888")
A("s_mov_b32 exec_hi, 0x88888888")
lg(f"ds_write_b128 v{vCW}, {v(ACC+60,4)}", "yw")
A("s_mov_b64 exec, -1")
A(f"s_lshl_b32 s24, s{sWR}, 13")
A(f"s_lshl_b32 s25, s{sWC}, 12")
A("s_add_u32 s25, s25, s24")
A(f"s_add_u32 s25, s25, {YL0}")
A(f"v_lshl_add_u32 v{CT+5}, v{vLANE}, 5, s25")
A(f"v_lshrrev_b32 v{CT+7}, 3, v{vLANE}")
A(f"s_lshl_b32 s25, s{sWC}, 4")
A(f"v_add_u32 v{CT+7}, s25, v{CT+7}")
A(f"v_lshlrev_b32 v{CT+7}, 4, v{CT+7}")
A(f"v_add_u32 v{CT+6}, 128, v{CT+7}")
A(f"v_and_b32 v{CT+8}, 7, v{vLANE}")
A(f"v_cmp_eq_u32 vcc, 0, v{CT+8}")
A(f"s_mul_i32 s26, s{sWR}, 544")
A(f"s_add_u32 s26, s26, {CARRY}")
A(f"s_lshl_b32 s24, s{sWC}, 11")
A(f"v_cndmask_b32 v{CT+7}, 0, v{CT+7}, vcc")
A(f"v_cndmask_b32 v{CT+6}, 0, v{CT+6}, vcc")
A(f"v_add_u32 v{CT+7}, s26, v{CT+7}")
A(f"v_add_u32 v{CT+6}, s26, v{CT+6}")
A(f"s_add_u32 s24, s24, s{sCHO}")
A(f"s_add_u32 s24, s24, {WS_YT}")
LG.waitall()
A("s_barrier")
Y = 32; CY = 48; YP = 56
for i in range(2):
    lg(f"ds_read_b128 {v(Y+8*i,4)}, v{CT+5} offset:{2048*i}", f"y{i}")
    lg(f"ds_read_b128 {v(Y+8*i+4,4)}, v{CT+5} offset:{2048*i+16}", f"y{i}")
    lg(f"ds_read_b128 {v(CY+4*i,4)}, v{CT+7-i}", f"y{i}")
for i in range(2):
    LG.wait(f"y{i}")
    for c_ in range(3): A(f"v_add_f32 v{Y+8*i+c_}, v{Y+8*i+c_}, v{CY+4*i+1+c_}")
    for c_ in range(4): A(f"v_cvt_pk_bf16_f32 v{YP+4*i+c_}, v{Y+8*i+2*c_}, v{Y+8*i+2*c_+1}")
    vm(f"buffer_store_dwordx4 {v(YP+4*i,4)}, v{vL16}, {srd(SWS)}, s24 offen offset:{1024*i} sc1", "yst")
stamp("ystiss")

E = 184
vXO = 4
XV, B2V, KDV, YV = 64, 72, 80, 120
XF, BF, SF, KF = 192, 208, 224, 240
vYFo, vYF, vYD, vYR, vXD = 5, 6, 7, 8, 11
A(f"v_and_b32 v{E}, 31, v{vLANE}")
A(f"v_lshrrev_b32 v{E+1}, 5, v{vLANE}")
A(f"s_lshl_b32 s24, s{sR2}, 1")
A(f"s_add_u32 s24, s24, s{sWC}")
A(f"s_mul_i32 s{sXO}, s24, 28672")
A(f"s_lshl_b32 s25, s{sC2}, 1")
A(f"s_add_u32 s25, s25, s{sWR}")
A("s_lshl_b32 s26, s25, 6")
A(f"s_add_u32 s{sXO}, s{sXO}, s26")
A(f"s_lshl_b32 s{sXS}, s{sWAVE}, 12")
A(f"s_add_u32 s{sXS}, s{sXS}, {XS}")
A(f"v_lshrrev_b32 v{E+2}, 2, v{vLANE}")
A(f"v_mul_u32_u24 v{vXD}, 896, v{E+2}")
A(f"v_lshl_add_u32 v{vXD}, v{vq}, 4, v{vXD}")
A(f"s_add_u32 m0, s{sXS}, 2048")
A(f"s_add_u32 s5, s{sXO}, {16*896-1024}")
vm(f"buffer_load_dwordx4 v{vXD}, {srd(SX)}, s{sXO} offen lds", "ex")
vm(f"buffer_load_dwordx4 v{vXD}, {srd(SX)}, s5 offen offset:1024 lds", "ex")
A(f"v_lshl_add_u32 v{E+3}, v{E+1}, 3, s26")
for j in range(4):
    vm(f"global_load_dwordx2 {v(B2V+2*j,2)}, v{E+3}, s[{pB2}:{pB2+1}] offset:{16*j}", "ex")
A("s_xor_b32 s26, s24, 1")
A("s_mul_i32 s27, s24, 114688")
A("s_mul_i32 s26, s26, 114688")
A(f"s_mul_i32 s5, s{sWAVE}, 28672")
A(f"s_add_u32 s5, s5, {WS_H}")
A(f"s_add_u32 s{s7A}, s27, s5")
A(f"s_add_u32 s{s7B}, s26, s5")
A(f"s_lshl_b32 s5, s{sRHO}, 12")
A(f"s_add_u32 s{sHOFF0}, s{s7A}, s5")
A(f"s_add_u32 s{sHOFF1}, s{s7B}, s5")
A(f"s_add_u32 s{sDA}, s{s7A}, 28672")
A(f"s_add_u32 s{sDB}, s{s7B}, 28672")
HBUF = [v(128 + 4 * i, 4) for i in range(12)] + [a(224 + 4 * i, 4) for i in range(8)] + [v(96 + 4 * i, 4) for i in range(6)]
assert NB <= len(HBUF)
def h_load(n, track=True):
    ks, jt = n // 2, n % 2
    so = sHOFF0 if jt == 0 else sHOFF1
    if ks % 4 == 0 and ks > 0:
        A(f"s_add_u32 s{so}, s{so}, 4096")
        A(f"s_cmp_eq_u32 s{so}, s{sDA if jt == 0 else sDB}")
        A(f"s_cselect_b32 s{so}, s{s7A if jt == 0 else s7B}, s{so}")
    s_ = f"buffer_load_dwordx4 {HBUF[n % NB]}, v{vL16}, {srd(SWS)}, s{so} offen offset:{1024*(ks%4)} sc1"
    if track: vm(s_, f"h{n}")
    else: A(s_)
VM.wait("hfl")
A(f"v_cmp_ne_u32 vcc, s{sTOK}, v{vHF}")
A(f"s_mov_b32 s{sDELTA}, 0")
A("s_cbranch_vccnz L_noprime")
for n in range(NB): h_load(n, False)
A(f"s_mov_b32 s{sDELTA}, 1")
LB("L_noprime")
stamp("primed")
base_q = list(VM.q)
VM.set(base_q + ["hp"] * NB)
VM.set(base_q)
def wait_both(tag):
    if tag not in VM.q: return
    idx = max(i for i, t in enumerate(VM.q) if t == tag)
    n = len(VM.q) - 1 - idx
    A(f"s_cmp_eq_u32 s{sDELTA}, 0")
    lab = f"L_wb{len(L)}"
    A(f"s_cbranch_scc1 {lab}a")
    A(f"s_waitcnt vmcnt({min(63, n+NB)})")
    A(f"s_branch {lab}b")
    LB(f"{lab}a")
    A(f"s_waitcnt vmcnt({n})")
    LB(f"{lab}b")
    VM.q = VM.q[len(VM.q) - n:] if n else []
pump(4); pump(5); pump(6)
A(f"v_mul_u32_u24 v{vXO}, 896, v{E}")
A(f"v_lshl_add_u32 v{vXO}, v{E+1}, 4, v{vXO}")
A(f"s_lshr_b32 s26, s{sR2}, 4")
A("s_mul_i32 s26, s26, 1792")
A("s_lshl_b32 s5, s25, 7")
A(f"s_add_u32 s{sYF}, s26, s5")
A(f"s_add_u32 s{sYF}, s{sYF}, {WS_YF}")
A(f"v_lshlrev_b32 v{vYFo}, 2, v{E}")
A(f"v_lshlrev_b32 v{vYD}, 12, v{E+2}")
A(f"v_lshl_add_u32 v{vYD}, v{vq}, 4, v{vYD}")
A(f"s_lshl_b32 s{sYD}, s25, 17")
A("s_lshl_b32 s26, s24, 6")
A(f"s_add_u32 s{sYD}, s{sYD}, s26")
A(f"s_add_u32 s{sYD}, s{sYD}, {WS_YT}")
A(f"v_lshl_add_u32 v{E+3}, v{E+1}, 2, v{vr}")
A(f"v_and_b32 v{E+2}, 1, v{vG}")
A(f"v_lshlrev_b32 v{vYR}, 6, v{E+3}")
A(f"v_lshl_add_u32 v{vYR}, v{E+2}, 5, v{vYR}")
A(f"v_lshl_add_u32 v{vYR}, v{vq}, 3, v{vYR}")
A(f"v_add_u32 v{vYR}, s{sXS}, v{vYR}")
A(f"v_lshlrev_b32 v{E+2}, 11, v{E+2}")
A(f"v_lshl_add_u32 v{E+2}, v{E+3}, 5, v{E+2}")
A(f"v_lshl_add_u32 v{E+2}, v{vq}, 3, v{E+2}")
A(f"s_lshl_b32 s26, s{sWC}, 12")
A(f"s_lshl_b32 s5, s{sWR}, 10")
A("s_add_u32 s26, s26, s5")
A(f"s_add_u32 s26, s26, {KVD}")
A(f"v_add_u32 v{E+2}, s26, v{E+2}")
for j in range(4):
    lg(f"ds_read_b64_tr_b16 {v(KDV+2*j,2)}, v{E+2} offset:{256*j}", "kd")
vNM, vRS, vRS2 = 25, 28, 30
RT = 176
def rnd_l(base, tmp):
    o = []
    for i in range(8): o.append(f"v_cvt_pk_bf16_f32 v{tmp+i}, v{base+2*i}, v{base+2*i+1}")
    for i in range(8):
        o.append(f"v_lshlrev_b32 v{base+2*i}, 16, v{tmp+i}")
        o.append(f"v_and_b32 v{base+2*i+1}, s{sMASK}, v{tmp+i}")
    return o
def rnd(base, tmp):
    for s_ in rnd_l(base, tmp): A(s_)
A(f"v_lshlrev_b32 v{vNM}, 16, v{vST}")
A(f"v_and_b32 v{vRS}, s{sMASK}, v{vST+1}")
A(f"v_rcp_f32 v{vRS}, v{vRS}")
for j in range(1, 4):
    A(f"s_xor_b32 s25, s{sWAVE}, {j}")
    A("s_mul_i32 s25, s25, 12288")
    A(f"s_add_u32 s25, s25, {4096*(j-1)}")
    A(f"v_add_u32 v{12+j}, s25, v{vL16}")
A(f"s_mul_i32 s25, s{sWAVE}, 12288")
A(f"v_add_u32 v12, s25, v{vL16}")
A(f"v_mul_f32 v{vRS2}, v{vRS}, v{vRS}")
A(f"v_lshlrev_b32 v{E+2}, 6, v{E}")
A(f"v_lshl_add_u32 v{E+2}, v{E+1}, 3, v{E+2}")
A(f"v_add_u32 v{E+2}, s{sXS}, v{E+2}")
A(f"s_lshr_b32 s24, s{sCHO}, 10")
A(f"s_mul_i32 s25, s{sWC}, 1792")
A("s_add_u32 s24, s24, s25")
A(f"s_add_u32 s24, s24, {WS_YF}")
wait_both("ex")
A(f"buffer_store_dword v{vTOK}, v{vZ1}, {srd(SWS)}, s24 offen sc1")
for j in range(4):
    lg(f"ds_read_b64 {v(XV+2*j,2)}, v{E+2} offset:{2048+16*j}", "xv")
LG.wait("kd")
for i in range(8):
    A(f"v_lshlrev_b32 v{BF+2*i}, 16, v{B2V+i}")
    A(f"v_and_b32 v{BF+2*i+1}, s{sMASK}, v{B2V+i}")
    A(f"v_lshlrev_b32 v{KF+2*i}, 16, v{KDV+i}")
    A(f"v_and_b32 v{KF+2*i+1}, s{sMASK}, v{KDV+i}")
LG.waitall()
for i in range(8):
    A(f"v_lshlrev_b32 v{XF+2*i}, 16, v{XV+i}")
    A(f"v_and_b32 v{XF+2*i+1}, s{sMASK}, v{XV+i}")
A("s_barrier")
stamp("yflag")

C("GEMM2")
A(f"s_cmp_eq_u32 s{sDELTA}, 1")
A("s_cbranch_scc1 L_go")
LB("L_hf")
A(f"buffer_load_dword v{vHF}, v{vHFo}, {srd(SWS)}, s{sHFA} offen sc1")
A("s_waitcnt vmcnt(0)")
A(f"v_cmp_ne_u32 vcc, s{sTOK}, v{vHF}")
A("s_cbranch_vccz L_hf_ok")
spin_guard("L_hf_ok")
A("s_branch L_hf")
LB("L_hf_ok")
VM.set([])
for n in range(NB): h_load(n)
LB("L_go")
stamp("hfok")
early = [f"v_add_f32 v{SF+i}, v{XF+i}, v{vNM}" for i in range(16)] + rnd_l(SF, RT) + \
        [f"v_mul_f32 v{SF+i}, v{SF+i}, v{vRS}" for i in range(16)] + rnd_l(SF, RT)
late = []
for i in range(8):
    late += [f"v_lshlrev_b32 v{RT}, 16, v{YV+i}", f"v_and_b32 v{RT+1}, s{sMASK}, v{YV+i}",
             f"v_add_f32 v{KF+2*i}, v{KF+2*i}, v{RT}", f"v_add_f32 v{KF+2*i+1}, v{KF+2*i+1}, v{RT+1}"]
late += rnd_l(KF, RT) + [f"v_mul_f32 v{SF+i}, v{SF+i}, v{KF+i}" for i in range(16)] + rnd_l(SF, RT)
N_YPOLL = int(opts.get("ypoll", "2"))
N_YCHK = int(opts.get("ychk", str(min(N_YPOLL + NB + 1, 30))))
N_YRD = int(opts.get("yrd", "47"))
for ks in range(28):
    for jt in range(2):
        n = 2 * ks + jt
        VM.wait(f"h{n}")
        hb = HBUF[n % NB]
        for jd in range(2):
            d = ACC + 16 * (2 * jd + jt)
            src = "0" if ks == 0 else v(d, 16)
            A(f"v_mfma_f32_32x32x16_bf16 {v(d,16)}, {a(8*ks+4*jd,4)}, {hb}, {src}")
            if early:
                for _ in range(4):
                    if early: A(early.pop(0))
            elif n > N_YRD:
                if LG.q: LG.waitall()
                for _ in range(5):
                    if late: A(late.pop(0))
        if n == N_YPOLL:
            vm(f"buffer_load_dword v{vYF}, v{vYFo}, {srd(SWS)}, s{sYF} offen sc1", "yfl")
        if n == N_YCHK:
            VM.wait("yfl")
            LB("L_yf")
            A(f"v_cmp_ne_u32 vcc, s{sTOK}, v{vYF}")
            A("s_cbranch_vccz L_yf_ok")
            spin_guard("L_yf_ok")
            A(f"buffer_load_dword v{vYF}, v{vYFo}, {srd(SWS)}, s{sYF} offen sc1")
            A("s_waitcnt vmcnt(0)")
            A("s_branch L_yf")
            LB("L_yf_ok")
            A(f"s_mov_b32 m0, s{sXS}")
            A(f"s_add_u32 s24, s{sYD}, {65536-1024}")
            vm(f"buffer_load_dwordx4 v{vYD}, {srd(SWS)}, s{sYD} offen sc1 lds", "yd")
            vm(f"buffer_load_dwordx4 v{vYD}, {srd(SWS)}, s24 offen offset:1024 sc1 lds", "yd")
        if n + NB < 56: h_load(n + NB)
        if n == N_YRD:
            VM.wait("yd")
            for j in range(4):
                lg(f"ds_read_b64_tr_b16 {v(YV+2*j,2)}, v{vYR} offset:{512*j}", "yv")
stamp("g2done")
C("reduction")
A("s_nop 7")
for j in (2, 1, 3):
    for i in range(4):
        lg(f"ds_write_b128 v{12+j}, {v(ACC+16*j+4*i,4)} offset:{1024*i}", "rw")
for s_ in late: A(s_)
LG.waitall()
A("s_barrier")
RD = 128
for j in range(3):
    for i in range(4):
        lg(f"ds_read_b128 {v(RD+16*j+4*i,4)}, v12 offset:{4096*j+1024*i}", f"r{j}")
for j in range(3):
    LG.wait(f"r{j}")
    for i in range(8):
        A(f"v_pk_add_f32 {v(ACC+2*i,2)}, {v(ACC+2*i,2)}, {v(RD+16*j+2*i,2)}")
stamp("reduced")
C("final epilogue")
O = ACC
if RND[0] == "1":
    for i in range(16): A(f"v_mul_f32 v{O+i}, v{O+i}, v{vRS2}")
    rnd(O, RT)
    for i in range(16): A(f"v_add_f32 v{O+i}, v{O+i}, v{BF+i}")
else:
    for i in range(16): A(f"v_fma_f32 v{O+i}, v{O+i}, v{vRS2}, v{BF+i}")
if RND[1] == "1": rnd(O, RT)
G_ = RD
A("s_mov_b32 s5, 0xbfb8aa3b")
for i in range(16): A(f"v_mul_f32 v{G_+i}, s5, v{O+i}")
for i in range(16): A(f"v_exp_f32 v{G_+i}, v{G_+i}")
for i in range(16): A(f"v_add_f32 v{G_+i}, 1.0, v{G_+i}")
for i in range(16): A(f"v_rcp_f32 v{G_+i}, v{G_+i}")
for i in range(16): A(f"v_mul_f32 v{O+i}, v{O+i}, v{G_+i}")
if RND[2] == "1": rnd(O, RT)
if RND[3] == "1":
    for i in range(16): A(f"v_mul_f32 v{O+i}, v{O+i}, v{SF+i}")
    rnd(O, RT)
    for i in range(16): A(f"v_add_f32 v{O+i}, v{O+i}, v{XF+i}")
else:
    for i in range(16): A(f"v_fmac_f32 v{XF+i}, v{O+i}, v{SF+i}")
    O = XF
for i in range(8): A(f"v_cvt_pk_bf16_f32 v{RT+i}, v{O+2*i}, v{O+2*i+1}")
A("s_nop 1")
for pr in range(2):
    A(f"v_permlane32_swap_b32 v{RT+4*pr}, v{RT+4*pr+2}")
    A(f"v_permlane32_swap_b32 v{RT+4*pr+1}, v{RT+4*pr+3}")
A("s_nop 1")
for pr in range(2):
    A(f"buffer_store_dwordx4 {v(RT+4*pr,4)}, v{vXO}, {srd(SOUT)}, s{sXO} offen offset:{32*pr}")
if TS:
    stamp("outiss")
    A("s_waitcnt vmcnt(0)")
    stamp("end")
    A("s_waitcnt lgkmcnt(0)")
    k = len(ts_names)
    for i in range(max(0, k - 3), k):
        A(f"v_writelane_b32 v{vTSR}, s{sTS0+2*(i%4)}, {i}")
    A(f"s_lshl_b32 s24, s{sJ}, 2")
    A(f"s_add_u32 s24, s24, s{sWAVE}")
    A("s_lshl_b32 s24, s24, 8")
    A(f"s_add_u32 s24, s24, {WS_TS}")
    A(f"v_lshlrev_b32 v10, 2, v{vLANE}")
    A(f"buffer_store_dword v{vTSR}, v10, {srd(SWS)}, s24 offen")
    L.insert(0, "; TSNAMES " + ",".join(ts_names))
LB("L_end")
A("s_endpgm")

LB("L_helper")
A(f"s_load_dwordx2 s[{pB1}:{pB1+1}], s[0:1], 64")
A(f"s_getpc_b64 s[{sHOFF0}:{sHOFF0+1}]")
A(f"v_lshlrev_b32 v{TMP}, 4, v0")
A(f"global_load_dwordx4 {v(GR,4)}, v{TMP}, s[{sHOFF0}:{sHOFF0+1}]")
common_consts()
A(f"s_mov_b32 s{sONES}, 0x3f803f80")
A(f"s_or_b32 s5, s2, s{sWAVE}")
A("s_cmp_lg_u32 s5, 0")
A("s_cbranch_scc1 L_notok")
A(f"s_or_b32 s5, s{sTMP64}, 1")
A(f"v_mov_b32 v{vTOK}, s5")
A(f"buffer_store_dword v{vTOK}, v{vZ}, {srd(SDBG)}, 0 offen sc1")
LB("L_notok")
A("s_cmp_lt_u32 s2, 16")
A("s_cbranch_scc1 L_hs_sel")
A(f"s_mov_b64 s[{GA}:{GA+1}], s[{GB}:{GB+1}]")
A(f"s_mov_b32 s{GA+2}, 1605632")
for g in range(4): A(f"v_mov_b32 v{vDA+g}, v{vDB+g}")
A(f"s_mov_b32 s{sA}, s{sB}")
A(f"s_mov_b32 s{sDA}, s{sDB}")
LB("L_hs_sel")
def h_issue():
    A(f"s_add_u32 m0, s{sSLOT}, s{sOA}")
    A(f"s_add_u32 s{sSLOT}, s{sSLOT}, 16384")
    for g in range(4):
        A(f"buffer_load_dwordx4 v{vDA+g}, {srd(GA)}, s{sA} offen offset:{1024*g} lds")
    A(f"s_add_u32 s{sA}, s{sA}, s{sDA}")
A(f"s_mov_b32 s{sCNT}, 0")
LB("L_h_pre")
h_issue()
A(f"s_add_u32 s{sCNT}, s{sCNT}, 1")
A(f"s_cmp_lt_u32 s{sCNT}, 7")
A("s_cbranch_scc1 L_h_pre")
A(f"buffer_load_dword v{vTOK}, v{vZ}, {srd(SDBG)}, 0 offen sc1")
HA = 32
for i in range(8): A(f"v_mov_b32 v{HA+i}, 0")
A(f"v_lshrrev_b32 v{vG}, 4, v{vLANE}")
A(f"v_bfe_u32 v{vr}, v{vLANE}, 2, 2")
A(f"v_and_b32 v{vq}, 3, v{vLANE}")
A("s_cmp_lt_u32 s2, 16")
A("s_cbranch_scc0 L_hcs")
A(f"v_and_b32 v{TMP}, 31, v{vLANE}")
A(f"v_lshrrev_b32 v{TMP+1}, 5, v{vLANE}")
A(f"v_bfe_u32 v{TMP+2}, v{vLANE}, 1, 3")
A(f"v_xor_b32 v{TMP+1}, v{TMP+1}, v{TMP+2}")
A(f"v_lshlrev_b32 v{TMP+1}, 4, v{TMP+1}")
A(f"v_lshl_add_u32 v{TMP+1}, v{TMP}, 7, v{TMP+1}")
A(f"v_add_u32 v{vRX}, s{sOA}, v{TMP+1}")
for s in range(1, 4): A(f"v_xor_b32 v{vRX+s}, {32*s}, v{vRX}")
for c in range(7):
    A(f"s_waitcnt vmcnt({25-4*c})")
    if c == 4:
        for s in range(4): A(f"v_add_u32 v{vRX+s}, 65536, v{vRX+s}")
    for s in range(4): A(f"ds_read_b128 {v(FA+4*s,4)}, v{vRX+s} offset:{16384*(c%4)}")
    for s in range(4):
        A(f"s_waitcnt lgkmcnt({3-s})")
        for n in range(4):
            A(f"v_dot2c_f32_bf16 v{HA+(n&1)}, s{sONES}, v{FA+4*s+n}")
            A(f"v_dot2c_f32_bf16 v{HA+2+(n&1)}, v{FA+4*s+n}, v{FA+4*s+n}")
vSUM, vSQ = HA, HA + 2
A("s_nop 2")
A(f"v_add_f32 v{vSUM}, v{HA}, v{HA+1}")
A(f"v_add_f32 v{vSQ}, v{HA+2}, v{HA+3}")
A(f"v_mov_b32 v{HA+4}, v{vSUM}")
A(f"v_mov_b32 v{HA+5}, v{vSQ}")
A("s_nop 1")
A(f"v_permlane32_swap_b32 v{vSUM}, v{HA+4}")
A(f"v_permlane32_swap_b32 v{vSQ}, v{HA+5}")
A("s_nop 1")
A(f"v_add_f32 v{vSUM}, v{vSUM}, v{HA+4}")
A(f"v_add_f32 v{vSQ}, v{vSQ}, v{HA+5}")
INV = 0x3b124925
A(f"v_mul_f32 v{vSUM}, {INV:#x}, v{vSUM}")
A(f"v_mul_f32 v{vSQ}, {INV:#x}, v{vSQ}")
A(f"v_fma_f32 v{vSQ}, -v{vSUM}, v{vSUM}, v{vSQ}")
A(f"v_max_f32 v{vSQ}, 0, v{vSQ}")
A(f"v_cvt_pk_bf16_f32 v{vSQ}, v{vSQ}, v{vSQ}")
A(f"v_lshlrev_b32 v{vSQ}, 16, v{vSQ}")
A(f"v_add_f32 v{vSQ}, 0x3727c5ac, v{vSQ}")
A(f"v_cvt_pk_bf16_f32 v{vSQ}, v{vSQ}, v{vSQ}")
A(f"v_lshlrev_b32 v{vSQ}, 16, v{vSQ}")
A(f"v_sqrt_f32 v{vSQ}, v{vSQ}")
A("s_waitcnt vmcnt(0)")
get_token("s")
A(f"v_cvt_pk_bf16_f32 v{GR}, -v{vSUM}, -v{vSUM}")
A(f"v_cvt_pk_bf16_f32 v{GR+1}, -v{vSUM}, v{vSQ}")
A(f"v_mov_b32 v{GR+2}, 0")
A(f"v_mov_b32 v{GR+3}, v{vTOK}")
A(f"v_lshlrev_b32 v{TMP}, 4, v{TMP}")
A(f"s_lshl_b32 s24, s{sR}, 2")
A(f"s_add_u32 s24, s24, s{sWAVE}")
A("s_lshl_b32 s24, s24, 9")
A(f"s_add_u32 s24, s24, {WS_STAT}")
A(f"buffer_store_dwordx4 {v(GR,4)}, v{TMP}, {srd(SWS)}, s24 offen sc1")
A("s_endpgm")
LB("L_hcs")
A(f"v_lshlrev_b32 v{TMP}, 6, v{vr}")
A(f"v_lshl_add_u32 v{TMP}, v{vr}, 8, v{TMP}")
A(f"v_lshrrev_b32 v{TMP+1}, 1, v{vG}")
A(f"v_lshl_add_u32 v{TMP}, v{TMP+1}, 11, v{TMP}")
A(f"v_and_b32 v{TMP+1}, 1, v{vG}")
A(f"v_lshl_add_u32 v{TMP}, v{TMP+1}, 5, v{TMP}")
A(f"v_lshl_add_u32 v{TMP}, v{vq}, 3, v{TMP}")
A(f"v_add_u32 v{vRX}, s{sOA}, v{TMP}")
for ft in range(1, 4): A(f"v_xor_b32 v{vRX+ft}, {64*ft}, v{vRX}")
A("s_waitcnt lgkmcnt(0)")
A(f"v_and_b32 v{TMP+2}, 127, v0")
A(f"s_lshl_b32 s24, s{sC}, 8")
A(f"v_lshl_add_u32 v{TMP+3}, v{TMP+2}, 1, s24")
A(f"global_load_ushort v{vH0}, v{TMP+3}, s[{pB1}:{pB1+1}]")
for c in range(7):
    A(f"s_waitcnt vmcnt({26-4*c})")
    if c == 4:
        for s in range(4): A(f"v_add_u32 v{vRX+s}, 65536, v{vRX+s}")
    for ft in range(4):
        A(f"ds_read_b64_tr_b16 {v(FA+4*ft,2)}, v{vRX+ft} offset:{16384*(c%4)}")
        A(f"ds_read_b64_tr_b16 {v(FA+4*ft+2,2)}, v{vRX+ft} offset:{16384*(c%4)+1024}")
    for ft in range(4):
        A(f"s_waitcnt lgkmcnt({6-2*ft})")
        for n in range(4):
            A(f"v_dot2c_f32_bf16 v{HA+ft}, s{sONES}, v{FA+4*ft+n}")
A(f"v_lshlrev_b32 v{TMP}, 2, v{vLANE}")
A(f"s_lshl_b32 s24, s{sWAVE}, 10")
A("s_add_u32 s24, s24, 131072")
A(f"v_add_u32 v{TMP}, s24, v{TMP}")
for ft in range(4): A(f"ds_write_b32 v{TMP}, v{HA+ft} offset:{256*ft}")
A(f"v_lshrrev_b32 v{TMP+1}, 5, v{TMP+2}")
A(f"v_and_b32 v{TMP+3}, 31, v{TMP+2}")
A(f"v_lshlrev_b32 v{TMP+3}, 2, v{TMP+3}")
A(f"v_lshl_add_u32 v{TMP+1}, v{TMP+1}, 8, v{TMP+3}")
A(f"v_add_u32 v{TMP+1}, 131072, v{TMP+1}")
A("s_waitcnt lgkmcnt(0)")
A("s_barrier")
for w in range(4):
    A(f"ds_read2_b32 {v(FA+2*w,2)}, v{TMP+1} offset0:0 offset1:32")
    if w < 3: A(f"v_add_u32 v{TMP+1}, 1024, v{TMP+1}")
A("s_waitcnt vmcnt(0) lgkmcnt(0)")
get_token("c")
for i in range(1, 8): A(f"v_add_f32 v{FA}, v{FA}, v{FA+i}")
vCS = FA
A(f"v_cvt_pk_bf16_f32 v{GR}, v{vCS}, v{vCS}")
A(f"v_lshlrev_b32 v{TMP}, 16, v{GR}")
A(f"v_sub_f32 v{TMP}, v{vCS}, v{TMP}")
A(f"v_cvt_pk_bf16_f32 v{GR}, v{vCS}, v{TMP}")
A(f"v_and_b32 v{TMP+1}, s{sMASK}, v{GR}")
A(f"v_sub_f32 v{TMP}, v{TMP}, v{TMP+1}")
A(f"v_lshlrev_b32 v{TMP+1}, 16, v{vH0}")
A(f"v_cvt_pk_bf16_f32 v{GR+1}, v{TMP}, v{TMP+1}")
A(f"v_mov_b32 v{GR+2}, 0")
A(f"v_mov_b32 v{GR+3}, v{vTOK}")
A(f"v_lshlrev_b32 v{TMP}, 4, v{TMP+2}")
A(f"s_lshl_b32 s24, s{sC}, 11")
A(f"s_add_u32 s24, s24, {WS_CS}")
A(f"buffer_store_dwordx4 {v(GR,4)}, v{TMP}, {srd(SWS)}, s24 offen sc1")
A("s_endpgm")

L.append(f""".fill 4096, 4, 0xbf800000
.section .rodata,"a"
.p2align 6
.amdhsa_kernel {KNAME}
  .amdhsa_next_free_vgpr 512
  .amdhsa_next_free_sgpr 102
  .amdhsa_accum_offset 256
  .amdhsa_group_segment_fixed_size 0
  .amdhsa_kernarg_size 112
  .amdhsa_user_sgpr_count 2
  .amdhsa_user_sgpr_kernarg_segment_ptr 1
  .amdhsa_system_sgpr_workgroup_id_x 1
.end_amdhsa_kernel
""")
open(sys.argv[1], "w").write("\n".join(L))
```

```python
import sys

opts = dict(a.split("=") for a in sys.argv[2:])
TS = int(opts.get("ts", "0"))
NB = int(opts.get("nb", "24"))
PRIME = int(opts.get("prime", "10"))
G1CAP = int(opts.get("g1cap", "2"))
CVCAP = int(opts.get("cvcap", "2"))
KNAME = "recurrent_scan__ssm_conv_h3__dense_activation_squared_relu__prompt_kernel"

WS_KVF, WS_YF, WS_HF, WS_STAT, WS_CS = 0x0000, 0x0400, 0x2000, 0x4000, 0xC000
WS_TS, WS_KVT, WS_YT, WS_H, WS_SIZE = 0x20000, 0x100000, 0x300000, 0x500000, 0x10000000
NH = 30
NWG = 224 + NH
LDS_BYTES = 163840
KVD = 131072
STG = 139264
KVL = 139264
HL = 147712
CARRY = 156416
YL0 = 98304
XS = 114688

L = []
def A(s): L.append("    " + s)
def LB(s): L.append(s + ":")
def C(s): L.append("    ; " + s)

class Q:
    def __init__(self, name, maxn):
        self.q = []; self.name = name; self.maxn = maxn; self.total = 0
    def push(self, tag): self.q.append(tag); self.total += 1
    def count(self, tag):
        if tag not in self.q: return None
        idx = max(i for i, t in enumerate(self.q) if t == tag)
        return min(len(self.q) - 1 - idx, self.maxn)
    def wait(self, tag):
        n = self.count(tag)
        if n is None: return
        A(f"s_waitcnt {self.name}({n})")
        self.q = self.q[len(self.q) - n:] if n else []
    def waitall(self):
        if self.q: A(f"s_waitcnt {self.name}(0)")
        self.q = []
    def set(self, lst): self.q = list(lst)
VM = Q("vmcnt", 63)
LG = Q("lgkmcnt", 15)

def E(it):
    if isinstance(it, str): A(it)
    elif isinstance(it, list):
        for x in it: E(x)
    elif it[0] == "vm": A(it[1]); VM.push(it[2])
    elif it[0] == "lg": A(it[1]); LG.push(it[2])
    elif it[0] == "wvm": VM.wait(it[1])
    elif it[0] == "wlg": LG.wait(it[1])
    elif it[0] == "wlgall": LG.waitall()
    elif it[0] == "lb": LB(it[1])
    elif it[0] == "stamp": stamp(it[1])
    elif it[0] == "mark": marks[it[1]] = VM.total
    else: raise ValueError(it)
marks = {}
def EM(lst):
    for x in lst: E(x)
class Side:
    def __init__(self): self.q = []
    def add(self, items): self.q += items
    def fill(self, n):
        while n > 0 and self.q:
            it = self.q.pop(0)
            E(it)
            if not (isinstance(it, tuple) and it[0] in ("mark", "stamp")): n -= 1
    def until(self, name):
        while name not in marks: E(self.q.pop(0))
    def flush(self):
        while self.q: E(self.q.pop(0))

sWAVE, sMASK = 3, 4
sR, sC, sR2, sC2, sWR, sWC = 6, 7, 8, 9, 10, 11
sA, sB, sWa, sWb = 12, 13, 14, 15
pSHK, pD, pB1, pB2 = 16, 18, 20, 22
sCNT, sFLG, sOA, sOB = 28, 29, 30, 31
sTOK, sONES, sHOFF0, sHOFF1 = 32, 33, 34, 35
sLO32, sTMP64, sSPIN, sW2M0, sSTG, sSLOT = 36, 38, 40, 41, 42, 43
GA, GB, SW2, SWS, SK, SV, SH, SOUT, SDBG = 44, 48, 52, 56, 60, 64, 68, 72, 76
SX = GA
sG0, sG1, sG2, sKFA = 80, 81, 82, 83
sTS0 = 84
sXO, sYF, sYD, sJ, sCHO, sHFA, sHFL, sDA = 92, 93, 94, 95, 96, 97, 98, 99
sXS = sSTG
def srd(r): return f"s[{r}:{r+3}]"

vLANE, vL16, vTSR = 1, 2, 3
vDA, vDB, vDR = 4, 8, 12
vRX, vRXh, vRW, vRWh = 16, 20, 24, 26
vG, vr, vq, vZ1 = 28, 29, 30, 31
vTOK, vDv, vST, vKFo, vKF, vPW = 32, 33, 34, 36, 37, 38
vCA0, vCA1, vCB, vYW, vCW, vGO = 42, 43, 44, 45, 46, 47
ACC = 48
FA, FB = 112, 128
T1 = 144
TMP = 176
GR = 176
CA, CACC, CBF = 112, 176, 240
vZ = 252
def v(r, n=1): return f"v{r}" if n == 1 else f"v[{r}:{r+n-1}]"
def a(r, n=1): return f"a{r}" if n == 1 else f"a[{r}:{r+n-1}]"

ts_names = []
def stamp(name):
    if not TS: return
    k = len(ts_names)
    if k >= 3:
        A(f"v_writelane_b32 v{vTSR}, s{sTS0+2*((k-3)%4)}, {k-3}")
    A(f"{'s_memtime' if opts.get('cyc') else 's_memrealtime'} s[{sTS0+2*(k%4)}:{sTS0+2*(k%4)+1}]")
    ts_names.append(name)

def spin_guard(ok):
    return [f"s_cmp_eq_u32 s{sSPIN}, 0", f"s_cbranch_scc1 {ok}", f"s_sub_u32 s{sSPIN}, s{sSPIN}, 1"]
def get_token(tag):
    return [("lb", f"L_tok{tag}"), f"v_readfirstlane_b32 s{sTOK}, v{vTOK}", f"s_cmp_lg_u32 s{sTOK}, 0",
            f"s_cbranch_scc1 L_tok_ok{tag}"] + spin_guard(f"L_tok_ok{tag}") + \
           ["s_sleep 2", f"buffer_load_dword v{vTOK}, v{vZ1}, {srd(SDBG)}, 0 offen sc1", "s_waitcnt vmcnt(0)",
            f"s_branch L_tok{tag}", ("lb", f"L_tok_ok{tag}")]

hdr = open("recurrent_scan__ssm_conv_h3__dense_activation_squared_relu__prompt.s.ref").read().split("\n")
for line in hdr:
    if line.startswith("; @launch"):
        L.append(f"; @launch grid=({NWG},1,1) block=(256,1,1) lds={LDS_BYTES}")
    elif line.startswith(";"):
        L.append(line)
    else:
        break
L.append(f""".amdgcn_target "amdgcn-amd-amdhsa--gfx950"
.text
.globl {KNAME}
.p2align 8
.type {KNAME},@function
{KNAME}:""")

def srd_consts(lst):
    o = []
    for r_, sz in lst:
        o += [f"s_mov_b32 s{r_+2}, {sz}", f"s_mov_b32 s{r_+3}, 0x20000"]
    return o
def da_db():
    o = [f"v_lshrrev_b32 v{TMP+2}, 1, v{TMP+4}",
         f"v_xor_b32 v{TMP+3}, v{TMP+1}, v{TMP+2}",
         f"v_lshl_add_u32 v{vDA}, v{TMP+3}, 4, v{TMP}",
         f"v_xor_b32 v{vDA+1}, 64, v{vDA}",
         f"v_add_u32 v{vDA+1}, 6144, v{vDA+1}",
         f"v_add_u32 v{vDA+2}, 12288, v{vDA}",
         f"v_add_u32 v{vDA+3}, 12288, v{vDA+1}",
         f"v_lshrrev_b32 v{vG}, 4, v{vLANE}",
         f"v_mul_u32_u24 v{TMP+2}, 3584, v{vG}",
         f"v_and_b32 v{TMP+3}, 15, v{vLANE}",
         f"v_lshlrev_b32 v{TMP+7}, 2, v{vG}",
         f"v_xor_b32 v{TMP+3}, v{TMP+3}, v{TMP+7}",
         f"v_lshl_add_u32 v{vDB}, v{TMP+3}, 4, v{TMP+2}"]
    o += [f"v_add_u32 v{vDB+g}, {13312*g}, v{vDB}" for g in range(1, 4)]
    o += [f"s_lshl_b32 s26, s{sR}, 2", f"s_add_u32 s26, s26, s{sWAVE}", f"s_mul_i32 s{sA}, s26, 28672",
          f"s_mul_i32 s{sB}, s{sWAVE}, 57344", f"s_lshl_b32 s26, s{sC}, 8", f"s_add_u32 s{sB}, s{sB}, s26",
          f"s_lshl_b32 s{sOA}, s{sWAVE}, 12", f"s_add_u32 s{sOB}, s{sOA}, 16384"]
    return o
def common_consts():
    return srd_consts(((SDBG, 256), (SWS, WS_SIZE))) + [f"v_mov_b32 v{vZ1}, 0", f"s_mov_b32 s{sMASK}, 0xffff0000",
            f"s_mov_b32 s{sSPIN}, 200000", f"v_lshlrev_b32 v{vL16}, 4, v{vLANE}",
            f"v_bfe_u32 v{vr}, v{vLANE}, 2, 2", f"v_and_b32 v{vq}, 3, v{vLANE}"]

for reg, off in ((SK, 8), (SV, 16), (pSHK, 24), (GA, 0), (GB, 56)):
    A(f"s_load_dwordx2 s[{reg}:{reg+1}], s[0:1], {off}")
stamp("start")
PF = opts.get("pf", "0")
def code_pf(n):
    A(f"s_getpc_b64 s[{sHOFF0}:{sHOFF0+1}]")
    A(f"v_lshlrev_b32 v{T1}, 4, v0")
    for i in range(n):
        E(("vm", f"global_load_dwordx4 {v(T1+4,4)}, v{T1}, s[{sHOFF0}:{sHOFF0+1}]", "pf"))
        if i < n - 1: A(f"v_add_u32 v{T1}, 4096, v{T1}")
if PF == "1": code_pf(4)
if PF == "3":
    A(f"s_getpc_b64 s[{sHOFF0}:{sHOFF0+1}]")
    A(f"v_lshlrev_b32 v{T1}, 6, v0")
    E(("vm", f"global_load_dword v{T1+4}, v{T1}, s[{sHOFF0}:{sHOFF0+1}]", "pf"))
A(f"v_and_b32 v{vLANE}, 63, v0")
A(f"v_lshrrev_b32 v{TMP}, 6, v0")
A(f"v_lshrrev_b32 v{TMP+4}, 3, v{vLANE}")
A(f"v_readfirstlane_b32 s{sWAVE}, v{TMP}")
A(f"v_mul_u32_u24 v{TMP}, 896, v{TMP+4}")
A(f"v_and_b32 v{TMP+1}, 7, v{vLANE}")
A(f"s_sub_u32 s{sJ}, s2, {NH}")
A("s_cbranch_scc1 L_helper")
A(f"s_cmp_ge_u32 s{sJ}, 224")
A("s_cbranch_scc1 L_end")
A(f"s_and_b32 s24, s{sJ}, 7")
A(f"s_lshr_b32 s25, s{sJ}, 3")
A("s_mul_i32 s26, s25, 37")
A("s_lshr_b32 s5, s26, 8")
A("s_mul_i32 s27, s5, 7")
A(f"s_sub_u32 s{sC2}, s25, s27")
A("s_lshl_b32 s27, s24, 2")
A(f"s_add_u32 s{sR2}, s27, s5")
A(f"v_and_b32 v{TMP+2}, 2, v{TMP+4}")
A(f"v_lshlrev_b32 v{TMP+2}, 1, v{TMP+2}")
A(f"v_xor_b32 v{TMP+3}, v{TMP+1}, v{TMP+2}")
A(f"v_lshl_add_u32 v{vDR}, v{TMP+3}, 4, v{TMP}")
A(f"v_add_u32 v{vDR+1}, 6144, v{vDR}")
A(f"s_lshl_b32 s26, s{sR2}, 2")
A(f"s_add_u32 s26, s26, s{sWAVE}")
A("s_mul_i32 s27, s26, 14336")
A(f"s_lshl_b32 s25, s{sC2}, 7")
A("s_add_u32 s27, s27, s25")
A("s_sub_u32 s25, s27, 7168")
A("s_cmp_eq_u32 s26, 0")
A("s_cselect_b32 s26, 0x7fff0000, s25")
A(f"s_mul_i32 s{sSTG}, s{sWAVE}, 5120")
A(f"s_add_u32 s{sSTG}, s{sSTG}, {STG}")
EM(srd_consts(((SK, 1835008), (SV, 1835008))))
A(f"s_mov_b32 m0, s{sSTG}")
A(f"s_lshl_b32 s25, s{sC2}, 9")
A(f"v_lshl_add_u32 v{TMP+6}, v{vLANE}, 3, s25")
A("s_waitcnt lgkmcnt(0)")
E(("vm", f"buffer_load_dwordx4 v{vDR}, {srd(SK)}, s26 offen lds", "kv"))
A(f"s_add_u32 m0, s{sSTG}, 1024")
E(("vm", f"global_load_dwordx2 v[{TMP+8}:{TMP+9}], v{TMP+6}, s[{pSHK}:{pSHK+1}]", "kv"))
E(("vm", f"buffer_load_dwordx4 v{vDR}, {srd(SK)}, s27 offen lds", "kv"))
E(("vm", f"buffer_load_dwordx4 v{vDR+1}, {srd(SK)}, s27 offen offset:1024 lds", "kv"))
A(f"s_add_u32 m0, s{sSTG}, 3072")
A("s_lshr_b32 s26, s24, 1")
E(("vm", f"buffer_load_dwordx4 v{vDR}, {srd(SV)}, s27 offen lds", "kv"))
E(("vm", f"buffer_load_dwordx4 v{vDR+1}, {srd(SV)}, s27 offen offset:1024 lds", "kv"))
stamp("kviss")
if PF == "2": code_pf(4)
for reg, off in ((pD, 40), (SDBG, 96), (SWS, 104), (SW2, 72), (SH, 32), (pB2, 80), (SOUT, 88)):
    A(f"s_load_dwordx2 s[{reg}:{reg+1}], s[0:1], {off}")
A("s_lshl_b32 s26, s26, 2")
A(f"s_add_u32 s{sR}, s26, s5")
A("s_and_b32 s27, s24, 1")
A("s_mul_i32 s27, s27, 7")
A(f"s_add_u32 s{sC}, s27, s{sC2}")
EM(srd_consts(((GA, 1835008), (GB, 1605632))))
EM(da_db())

def g1_item(c):
    sl = 32768 * (c % 4); t = f"c{c}"
    o = []
    for g in range(4):
        d = ("vm", f"buffer_load_dwordx4 v{vDA+g}, {srd(GA)}, s{sA} offen offset:{1024*g} lds", t)
        if g == 0:
            fill = f"s_add_u32 s{sB}, s{sB}, {64*3584}" if c > 0 else "s_nop 0"
            o.append([f"s_add_u32 m0, s{sOA}, {sl}", fill, d])
        else: o.append(d)
    for g in range(4):
        d = ("vm", f"buffer_load_dwordx4 v{vDB+g}, {srd(GB)}, s{sB} offen offset:{1024*g} lds", t)
        if g == 0: o.append([f"s_add_u32 m0, s{sOB}, {sl}", f"s_add_u32 s{sA}, s{sA}, 128", d])
        else: o.append(d)
    return o
W2SLOT = [3, 0, 1, 2, 0, 1, 2]
def w_item(j):
    sl = 32768 * W2SLOT[j]; t = f"w{j}"
    o = []
    for h_, (sw, other) in enumerate(((sWa, sWb), (sWb, sWa))):
        for g in range(4):
            d = ("vm", f"buffer_load_dwordx4 v{vDR+g}, {srd(SW2)}, s{sw} offen offset:{1024*g} lds", t)
            if g == 0:
                fill = f"s_add_u32 s{other}, s{other}, {64*896}" if (j > 0 or h_ == 1) else "s_nop 0"
                o.append([f"s_add_u32 m0, s{sW2M0}, {sl+4096*h_}", fill, d])
            else: o.append(d)
    return o

EM(g1_item(0))
stamp("c0iss")
setup = common_consts() + srd_consts(((SW2, 1605632), (SH, 1835008), (SOUT, 1835008))) + [
    f"s_lshr_b32 s{sWR}, s{sWAVE}, 1", f"s_and_b32 s{sWC}, s{sWAVE}, 1",
    f"v_lshlrev_b32 v{TMP}, 1, v{vG}", f"v_lshrrev_b32 v{TMP+1}, 1, v{vq}", f"v_add_u32 v{TMP}, v{TMP}, v{TMP+1}",
    f"v_and_b32 v{TMP+1}, 2, v{vr}", f"v_lshlrev_b32 v{TMP+1}, 1, v{TMP+1}", f"v_xor_b32 v{TMP}, v{TMP}, v{TMP+1}",
    f"v_lshlrev_b32 v{TMP}, 4, v{TMP}", f"v_lshl_add_u32 v{TMP}, v{vr}, 7, v{TMP}", f"v_and_b32 v{TMP+1}, 1, v{vq}",
    f"v_lshl_add_u32 v{TMP}, v{TMP+1}, 3, v{TMP}", f"v_add_u32 v{TMP+11}, s{sSTG}, v{TMP}",
    f"s_lshl_b32 s5, s{sC2}, 7", f"v_lshl_add_u32 v{TMP}, v{vLANE}, 1, s5",
    "s_waitcnt lgkmcnt(0)",
    ("vm", f"global_load_ushort v{vDv}, v{TMP}, s[{pD}:{pD+1}]", "sm")]
setup += [f"v_mov_b32 v{vZ+i}, 0" for i in range(4)]
setup += [f"v_and_b32 v{TMP+1}, 31, v{vLANE}", f"v_lshrrev_b32 v{TMP+2}, 5, v{vLANE}", f"v_bfe_u32 v{TMP+3}, v{vLANE}, 1, 3",
          f"v_xor_b32 v{TMP+2}, v{TMP+2}, v{TMP+3}", f"v_lshlrev_b32 v{TMP+2}, 4, v{TMP+2}",
          f"v_lshl_add_u32 v{TMP+1}, v{TMP+1}, 7, v{TMP+2}", f"s_lshl_b32 s26, s{sWR}, 13", f"v_add_u32 v{vRX}, s26, v{TMP+1}"]
setup += [f"v_xor_b32 v{vRX+s}, {32*s}, v{vRX}" for s in range(1, 4)]
setup += [f"s_lshl_b32 s26, s{sWC}, 1", f"v_xor_b32 v{TMP+1}, s26, v{vr}", f"v_lshlrev_b32 v{TMP+1}, 6, v{TMP+1}",
          f"v_lshl_add_u32 v{TMP+1}, v{vr}, 8, v{TMP+1}", f"v_lshrrev_b32 v{TMP+2}, 1, v{vG}",
          f"v_lshl_add_u32 v{TMP+1}, v{TMP+2}, 11, v{TMP+1}", f"v_and_b32 v{TMP+2}, 1, v{vG}",
          f"v_lshl_add_u32 v{TMP+1}, v{TMP+2}, 5, v{TMP+1}", f"v_lshl_add_u32 v{TMP+1}, v{vq}, 3, v{TMP+1}",
          f"v_add_u32 v{vRW}, 16384, v{TMP+1}", f"v_xor_b32 v{vRW+1}, 64, v{vRW}"]
def zip_with(work, dmas):
    step = max(1, len(work) // (len(dmas) + 1))
    for i, s_ in enumerate(work):
        E(s_)
        if dmas and i % step == step - 1: E(dmas.pop(0))
    EM(dmas)
zip_with(setup, g1_item(1))

C("KV phase")
VM.wait("kv")
stamp("kvarr")
vKVR = TMP + 11
P, VV = TMP + 12, TMP + 22
for a_ in range(1, 6):
    E(("lg", f"ds_read_b64_tr_b16 {v(P+2*(a_-1),2)}, v{vKVR} offset:{512*a_}", "k"))
for a_ in range(4):
    E(("lg", f"ds_read_b64_tr_b16 {v(VV+2*a_,2)}, v{vKVR} offset:{3072+512*a_}", "v"))
kvc = []
K = kvc.append
S0, S1 = TMP + 8, TMP + 9
Wa, Wb, Wc, Wd, We = TMP, TMP + 1, TMP + 2, TMP + 3, TMP + 6
K(f"v_alignbit_b32 v{Wa}, v{S0}, v{S0}, 16")
K(f"v_alignbit_b32 v{Wb}, v{S1}, v{S1}, 16")
K(f"v_and_b32 v{Wc}, 0xffff, v{S0}")
K(f"v_and_b32 v{We}, s{sMASK}, v{S1}")
K(f"v_bfi_b32 v{Wd}, s{sMASK}, v{S0}, v{S1}")
KS = TMP + 30
K(("wlg", "k"))
for tau in range(16):
    K(f"v_dot2_f32_bf16 v{KS+tau}, v{P+tau//2+2}, v{Wa if tau & 1 else Wc}, 0")
for tau in range(16):
    K(f"v_dot2c_f32_bf16 v{KS+tau}, v{P+tau//2+1}, v{Wb if tau & 1 else Wd}")
for tau in range(0, 16, 2):
    K(f"v_dot2c_f32_bf16 v{KS+tau}, v{P+tau//2}, v{We}")
K(("wlg", "v"))
UV = TMP + 46
for i in range(8):
    K(f"v_lshlrev_b32 v{UV+2*i}, 16, v{VV+i}")
    K(f"v_and_b32 v{UV+2*i+1}, s{sMASK}, v{VV+i}")
for i in range(8):
    K(f"v_pk_mul_f32 {v(KS+2*i,2)}, {v(KS+2*i,2)}, {v(UV+2*i,2)}")
OUTR = TMP + 12
assert OUTR % 4 == 0
for p in range(4):
    for h in range(2):
        K(f"v_cvt_pk_bf16_f32 v{OUTR+2*p+h}, v{KS+8*h+p}, v{KS+8*h+4+p}")
K(f"v_lshl_add_u32 v{TMP}, v{vLANE}, 5, s{sSTG}")
K(("lg", f"ds_write_b128 v{TMP}, {v(OUTR,4)}", "kw"))
K(("lg", f"ds_write_b128 v{TMP}, {v(OUTR+4,4)} offset:16", "kw"))
zip_with(kvc, g1_item(2))
for i in range(4):
    A(f"v_mfma_f32_32x32x16_bf16 {v(ACC+16*i,16)}, {v(vZ,4)}, {v(vZ,4)}, 0")
A(f"v_bfe_u32 v{T1}, v{vLANE}, 1, 2")
A(f"v_mul_u32_u24 v{T1}, 5120, v{T1}")
A(f"v_lshrrev_b32 v{T1+1}, 3, v{vLANE}")
A(f"v_lshl_add_u32 v{T1}, v{T1+1}, 5, v{T1}")
A(f"v_and_b32 v{T1+2}, 1, v{vLANE}")
A(f"v_lshl_add_u32 v{T1}, v{T1+2}, 4, v{T1}")
A(f"s_lshl_b32 s26, s{sWAVE}, 9")
A(f"s_add_u32 s26, s26, {STG}")
A(f"v_add_u32 v{T1}, s26, v{T1}")
VM.wait("c0")
LG.waitall()
A("s_barrier")
stamp("g1start")

C("GEMM1")
def g1_reads(n):
    c, s = n // 4, n % 4
    F = FA if n % 2 == 0 else FB
    hi = (c % 4) >> 1; o = 32768 * (c & 1)
    rx = (vRXh if hi else vRX) + s; rw = vRWh if hi else vRW
    return [("lg", f"ds_read_b128 {v(F,4)}, v{rx} offset:{o}", f"x0_{n}"),
            ("lg", f"ds_read_b64_tr_b16 {v(F+8,2)}, v{rw} offset:{o+4096*s}", f"w0_{n}"),
            ("lg", f"ds_read_b64_tr_b16 {v(F+10,2)}, v{rw} offset:{o+4096*s+1024}", f"w0_{n}"),
            ("lg", f"ds_read_b128 {v(F+4,4)}, v{rx} offset:{o+4096}", f"x1_{n}"),
            ("lg", f"ds_read_b64_tr_b16 {v(F+12,2)}, v{rw+1} offset:{o+4096*s}", f"w1_{n}"),
            ("lg", f"ds_read_b64_tr_b16 {v(F+14,2)}, v{rw+1} offset:{o+4096*s+1024}", f"w1_{n}")]
def g1_mf(F):
    return [f"v_mfma_f32_32x32x16_bf16 {v(ACC+16*(2*jf+tt),16)}, {v(F+8+4*jf,4)}, {v(F+4*tt,4)}, {v(ACC+16*(2*jf+tt),16)}"
            for jf, tt in ((0, 0), (0, 1), (1, 0), (1, 1))]
KO = T1 + 4
assert KO % 4 == 0
E(("lg", f"ds_read_b128 {v(KO,4)}, v{T1}", "ko"))
E(("lg", f"ds_read_b128 {v(KO+4,4)}, v{T1} offset:256", "ko"))
EM(g1_reads(0))
side = Side()
side.add([f"v_and_b32 v{T1+2}, 7, v{vLANE}", f"v_lshlrev_b32 v{T1+2}, 4, v{T1+2}", f"v_lshl_add_u32 v{T1+2}, v{T1+1}, 12, v{T1+2}",
          f"s_lshl_b32 s26, s{sC2}, 2", f"s_add_u32 s26, s26, s{sWAVE}", "s_lshl_b32 s26, s26, 16", f"s_lshl_b32 s27, s{sR2}, 7",
          "s_add_u32 s26, s26, s27", f"s_add_u32 s26, s26, {WS_KVT}", "s_add_u32 s27, s26, 32768",
          ("vm", f"buffer_store_dwordx4 {v(KO,4)}, v{T1+2}, {srd(SWS)}, s26 offen sc1", "kvst"),
          ("vm", f"buffer_store_dwordx4 {v(KO+4,4)}, v{T1+2}, {srd(SWS)}, s27 offen sc1", "kvst"),
          ("vm", f"buffer_load_dword v{vTOK}, v{vZ1}, {srd(SDBG)}, 0 offen sc1", "tok"), ("mark", "s0")])
side.add([f"v_add_u32 v{vRXh+s}, 65536, v{vRX+s}" for s in range(4)] + [f"v_add_u32 v{vRWh+i}, 65536, v{vRW+i}" for i in range(2)])
side.add([("mark", "hi")])
side.add([f"v_add_u32 v{vDR+2}, 12288, v{vDR}", f"v_add_u32 v{vDR+3}, 18432, v{vDR}", f"s_lshl_b32 s{sW2M0}, s{sWAVE}, 13",
          f"s_mul_i32 s{sWa}, s{sWAVE}, 401408", f"s_lshl_b32 s26, s{sC2}, 7", f"s_add_u32 s{sWa}, s{sWa}, s26",
          f"s_add_u32 s{sWb}, s{sWa}, {32*896}",
          f"s_lshl_b32 s{sCHO}, s{sJ}, 1", f"s_add_u32 s{sCHO}, s{sCHO}, s{sWR}", f"s_lshl_b32 s{sCHO}, s{sCHO}, 12",
          f"s_mov_b32 s{sLO32}, -1", f"s_mov_b32 s{sLO32+1}, 0", ("mark", "consts")])
side.add([("wvm", "sm"), f"v_lshlrev_b32 v{vDv}, 16, v{vDv}", f"s_lshl_b32 s26, s{sWAVE}, 11", f"s_add_u32 s26, s26, {KVD}",
          f"v_lshl_add_u32 v{TMP}, v{vLANE}, 5, s26"])
side.add([f"v_mul_f32 v{KS+i}, v{KS+i}, v{vDv}" for i in range(16)])
side.add([f"v_cvt_pk_bf16_f32 v{OUTR+8+i}, v{KS+2*i}, v{KS+2*i+1}" for i in range(8)])
side.add([("lg", f"ds_write_b128 v{TMP}, {v(OUTR+8,4)}", "kd"), ("lg", f"ds_write_b128 v{TMP}, {v(OUTR+12,4)} offset:16", "kd"),
          ("mark", "kvd")])
T = T1 + 12
addr_work = [
    f"v_and_b32 v{vGO}, 31, v{vLANE}", f"v_lshlrev_b32 v{vKFo}, 2, v{vGO}", f"v_lshlrev_b32 v{vGO}, 4, v{vGO}",
    f"s_lshl_b32 s24, s{sR}, 1", f"s_add_u32 s24, s24, s{sWR}",
    f"s_lshl_b32 s25, s{sC}, 1", f"s_add_u32 s25, s25, s{sWC}",
    f"s_lshl_b32 s{sG0}, s24, 10", f"s_add_u32 s{sG0}, s{sG0}, {WS_STAT}",
    f"s_lshl_b32 s{sG1}, s25, 10", f"s_add_u32 s{sG1}, s{sG1}, {WS_CS}",
    f"s_lshl_b32 s{sG2}, s{sR2}, 1", f"s_add_u32 s{sG2}, s{sG2}, s{sWC}", f"s_lshl_b32 s{sG2}, s{sG2}, 9",
    f"s_add_u32 s{sG2}, s{sG2}, {WS_STAT}",
    f"s_lshr_b32 s{sKFA}, s{sJ}, 5", f"s_lshl_b32 s{sKFA}, s{sKFA}, 7", ("mark", "ga"),
    f"s_mul_i32 s{sHOFF0}, s24, 229376", "s_lshl_b32 s26, s25, 12", f"s_add_u32 s{sHOFF0}, s{sHOFF0}, s26",
    f"s_add_u32 s{sHOFF0}, s{sHOFF0}, {WS_H}", f"s_add_u32 s{sHOFF1}, s{sHOFF0}, 114688",
    f"s_lshl_b32 s{sHFL}, s24, 7", "s_lshl_b32 s26, s25, 2", f"s_add_u32 s{sHFL}, s{sHFL}, s26", f"s_add_u32 s{sHFL}, s{sHFL}, {WS_HF}",
    f"v_and_b32 v{T}, 1, v{vG}", f"v_lshlrev_b32 v{T}, 1, v{T}", f"v_lshrrev_b32 v{T+1}, 1, v{vq}", f"v_add_u32 v{T}, v{T}, v{T+1}",
    f"v_lshrrev_b32 v{T+1}, 1, v{vr}", f"v_xor_b32 v{T+1}, s{sWR}, v{T+1}", f"v_lshl_add_u32 v{T}, v{T+1}, 2, v{T}",
    f"v_lshlrev_b32 v{T}, 4, v{T}", f"v_lshl_add_u32 v{T}, v{vr}, 7, v{T}", f"v_lshrrev_b32 v{T+1}, 1, v{vG}",
    f"v_lshl_add_u32 v{T}, v{T+1}, 9, v{T}", f"v_and_b32 v{T+1}, 1, v{vq}", f"v_lshl_add_u32 v{T}, v{T+1}, 3, v{T}",
    f"v_add_u32 v{vPW}, s{sW2M0}, v{T}", f"v_xor_b32 v{vPW+1}, 64, v{vPW}", f"v_add_u32 v{vPW+2}, 65536, v{vPW}",
    f"v_add_u32 v{vPW+3}, 65536, v{vPW+1}",
    f"v_lshl_add_u32 v{T}, v{vG}, 1, v{vr}", f"v_lshlrev_b32 v{T}, 5, v{T}", f"v_lshl_add_u32 v{T}, v{vq}, 3, v{T}",
    f"s_mul_i32 s24, s{sWR}, 4224", f"s_add_u32 s24, s24, {KVL+128-96}", f"v_add_u32 v{vCA0}, s24, v{T}",
    f"v_add_u32 v{vCA1}, 2048, v{vCA0}",
    f"v_sub_u32 v{T}, v{vq}, v{vr}", f"v_lshlrev_b32 v{T}, 3, v{T}", f"v_lshlrev_b32 v{T+1}, 6, v{vG}", f"v_sub_u32 v{T}, v{T}, v{T+1}",
    f"s_mul_i32 s24, s{sWR}, 4352", f"s_lshl_b32 s25, s{sWC}, 7", "s_add_u32 s24, s24, s25", f"s_add_u32 s24, s24, {HL+256+96-32}",
    f"v_add_u32 v{vCB}, s24, v{T}",
    f"s_lshl_b32 s24, s{sWR}, 13", f"s_lshl_b32 s25, s{sWC}, 8", "s_add_u32 s25, s25, s24", f"s_add_u32 s25, s25, {YL0}",
    f"v_lshl_add_u32 v{vYW}, v{vLANE}, 2, s25",
    f"v_and_b32 v{T}, 1, v{vG}", f"v_lshlrev_b32 v{T}, 1, v{T}", f"v_lshrrev_b32 v{T+1}, 1, v{vG}", f"v_add_u32 v{T}, v{T}, v{T+1}",
    f"v_lshl_add_u32 v{T}, v{vr}, 2, v{T}", f"s_mul_i32 s26, s{sWR}, 544", f"s_lshl_b32 s25, s{sWC}, 4", "s_add_u32 s25, s25, s26",
    f"s_add_u32 s25, s25, {CARRY+16}", f"v_lshl_add_u32 v{vCW}, v{T}, 5, s25"]
kvflag = get_token("m") + [f"s_cmp_lg_u32 s{sWAVE}, 0", "s_cbranch_scc1 L_nokvflag", f"s_lshl_b32 s5, s{sC2}, 7",
          f"s_lshl_b32 s27, s{sR2}, 2", "s_add_u32 s5, s5, s27",
          f"buffer_store_dword v{vTOK}, v{vZ1}, {srd(SWS)}, s5 offen sc1", ("lb", "L_nokvflag")]
h_load_grp = [f"s_mul_i32 s5, s{sWR}, 4352", f"s_lshl_b32 s27, s{sWC}, 11", "s_add_u32 s5, s5, s27", f"s_add_u32 m0, s5, {HL+256}",
              f"s_add_u32 s27, s27, s{sCHO}",
              ("vm", f"buffer_load_dwordx4 v{vL16}, {srd(SH)}, s27 offen lds", "h"),
              ("vm", f"buffer_load_dwordx4 v{vL16}, {srd(SH)}, s27 offen offset:1024 lds", "h")]
pads = [f"s_mul_i32 s5, s{sWR}, 4352", f"s_mul_i32 s27, s{sWR}, 4224", f"s_add_u32 s5, s5, {HL}", f"s_add_u32 s27, s27, {KVL}",
        f"s_cmp_eq_u32 s{sWC}, 0", "s_cselect_b32 s5, s5, s27", "s_cselect_b32 s27, 0xff00, 0", "s_or_b32 s27, s27, 0xff",
        f"v_add_u32 v{T+2}, s5, v{vL16}", f"s_mul_i32 s5, s{sWR}, 544", f"s_add_u32 s5, s5, {CARRY}", f"v_mov_b32 v{T+3}, s5",
        "s_mov_b32 exec_lo, s27", "s_mov_b32 exec_hi, 0",
        ("lg", f"ds_write_b128 v{T+2}, {v(vZ,4)}", "pad"), ("lg", f"ds_write_b128 v{T+3}, {v(vZ,4)}", "pad"),
        "s_mov_b64 exec, -1"]
def granule_loads(track):
    o = [f"buffer_load_dwordx4 {v(GR,4)}, v{vGO}, {srd(SWS)}, s{sG0} offen sc1",
         f"buffer_load_dwordx4 {v(GR+4,4)}, v{vGO}, {srd(SWS)}, s{sG0} offen offset:512 sc1",
         f"buffer_load_dwordx4 {v(GR+8,4)}, v{vGO}, {srd(SWS)}, s{sG1} offen sc1",
         f"buffer_load_dwordx4 {v(GR+12,4)}, v{vGO}, {srd(SWS)}, s{sG1} offen offset:512 sc1",
         f"buffer_load_dwordx4 {v(GR+16,4)}, v{vGO}, {srd(SWS)}, s{sG2} offen sc1"]
    return [("vm", x, "gr") for x in o] if track else o
kv_dma = [f"s_mul_i32 s5, s{sWR}, 4224", f"s_lshl_b32 s27, s{sWC}, 11", "s_add_u32 s5, s5, s27", f"s_add_u32 m0, s5, {KVL+128}",
          f"s_add_u32 s27, s27, s{sCHO}", f"s_add_u32 s27, s27, {WS_KVT}",
          f"buffer_load_dwordx4 v{vL16}, {srd(SWS)}, s27 offen sc1 lds",
          f"buffer_load_dwordx4 v{vL16}, {srd(SWS)}, s27 offen offset:1024 sc1 lds"]
kv_try = [("wvm", "kf"), f"v_cmp_ne_u32 vcc, s{sTOK}, v{vKF}", f"s_mov_b32 s{sFLG}, 0", "s_cbranch_vccnz L_kv_late"] + kv_dma + \
         [f"s_mov_b32 s{sFLG}, 1", ("lb", "L_kv_late"), ("mark", "kvtry")]
KFPOLL = int(opts.get("kfpoll", "17"))
KFCHK = int(opts.get("kfchk", "25"))
GRLD = int(opts.get("grld", "21"))
hooks = {9: [h_load_grp], KFCHK: [kv_try]}
for n in range(28):
    c, s = n // 4, n % 4
    F = FA if n % 2 == 0 else FB
    M = g1_mf(F)
    if s == 0:
        item = g1_item(c + 3) if c + 3 < 7 else w_item(c + 3 - 7)
    D = item[2 * s: 2 * s + 2]
    R = g1_reads(n + 1) if n < 27 else []
    if n == 3: side.until("s0")
    if n == 7: side.until("hi")
    if n == 8: side.q.insert(0, kvflag); side.add(addr_work); side.add([pads])
    if n == 9: side.until("consts")
    if n in (KFPOLL, GRLD): side.until("kvd"); side.until("ga")
    if n == KFPOLL: side.q.insert(0, ("vm", f"buffer_load_dword v{vKF}, v{vKFo}, {srd(SWS)}, s{sKFA} offen sc1", "kf"))
    if n == GRLD: side.q[0:0] = granule_loads(True)
    if s < 3:
        LG.wait(f"w0_{n}"); A(M[0]); EM(R[0:2]); side.fill(G1CAP)
        for _ in range(int(opts.get("pad", "0"))): A("s_mov_b32 s100, 0x12345678" if opts.get("pad8") else "s_nop 0")
        LG.wait(f"x1_{n}"); A(M[1]); E(R[2]); E(D[0]); side.fill(G1CAP)
        LG.wait(f"w1_{n}"); A(M[2]); EM(R[3:5]); side.fill(G1CAP)
        A(M[3]); E(R[5]); E(D[1]); side.fill(G1CAP)
    else:
        LG.wait(f"w0_{n}"); A(M[0]); E(D[0]); side.fill(G1CAP + 1)
        LG.wait(f"x1_{n}"); A(M[1])
        if n < 27:
            if TS >= 2: stamp(f"b{c}")
            if c == 1: VM.wait("tok")
            VM.wait(f"c{c+1}")
            LG.waitall()
            if TS >= 2: stamp(f"w{c}")
            A("s_barrier")
            if TS >= 2: stamp(f"a{c}")
            EM(R[0:3])
        else:
            LG.wait(f"w1_{n}")
        A(M[2]); EM(R[3:6])
        A(M[3]); E(D[1]); side.fill(G1CAP + 1)
    for g_ in hooks.get(n, []): E(g_)
assert KFPOLL > 12 and GRLD > 14
side.flush()
stamp("g1done")

C("aug")
VM.wait("gr")
LB("L_gr")
A(f"v_cmp_ne_u32 vcc, s{sTOK}, v{GR+3}")
for k_ in range(1, 5):
    A(f"v_cmp_ne_u32 s[{sTMP64}:{sTMP64+1}], s{sTOK}, v{GR+4*k_+3}")
    A(f"s_or_b64 vcc, vcc, s[{sTMP64}:{sTMP64+1}]")
A("s_cmp_eq_u64 vcc, 0")
A("s_cbranch_scc1 L_gr_ok")
EM(spin_guard("L_gr_ok"))
EM(granule_loads(False))
A("s_waitcnt vmcnt(0)")
A("s_branch L_gr")
LB("L_gr_ok")
GX, GW = GR, GR + 8
for r_ in (GX, GX + 1, GX + 4, GX + 5):
    A(f"v_cndmask_b32 v{r_}, 0, v{r_}, s[{sLO32}:{sLO32+1}]")
for r_ in (GX + 3, GX + 7, GW + 3, GW + 7):
    A(f"v_mov_b32 v{r_}, 0")
A(f"v_mov_b32 v{vST}, v{GR+16}")
A(f"v_mov_b32 v{vST+1}, v{GR+17}")
for jf, tt in ((0, 0), (0, 1), (1, 0), (1, 1)):
    A(f"v_mfma_f32_32x32x16_bf16 {v(ACC+16*(2*jf+tt),16)}, {v(GW+4*jf,4)}, {v(GX+4*tt,4)}, {v(ACC+16*(2*jf+tt),16)}")
A(f"s_cmp_eq_u32 s{sFLG}, 1")
A("s_cbranch_scc1 L_kv_done")
LB("L_kvf")
A(f"buffer_load_dword v{vKF}, v{vKFo}, {srd(SWS)}, s{sKFA} offen sc1")
A("s_waitcnt vmcnt(0)")
A(f"v_cmp_ne_u32 vcc, s{sTOK}, v{vKF}")
A("s_cbranch_vccz L_kvf_ok")
EM(spin_guard("L_kvf_ok"))
A("s_branch L_kvf")
LB("L_kvf_ok")
EM(kv_dma)
A("s_waitcnt vmcnt(0)")
LB("L_kv_done")
nk = VM.total - marks["kvtry"]
A(f"s_waitcnt vmcnt({nk})")
VM.set(VM.q[len(VM.q) - nk:] if nk else [])
def pump(j):
    sl = W2SLOT[j]
    o = [("wvm", f"w{j}")]
    for s in range(4):
        for jd in range(2):
            for e in range(2):
                o.append(("lg", f"ds_read_b64_tr_b16 {a(32*j+8*s+4*jd+2*e,2)}, v{vPW+jd+2*(sl>>1)} offset:{32768*(sl&1)+2048*s+1024*e}", f"p{j}"))
    return o
EM(pump(0))
LG.waitall()
A("s_barrier")
stamp("convstart")

C("conv")
side = Side()
for n, (jf, tt) in enumerate(((0, 0), (0, 1), (1, 0), (1, 1))):
    b = ACC + 16 * (2 * jf + tt)
    side.add([f"v_max_f32 v{b+i}, 0, v{b+i}" for i in range(16)])
    side.add([f"v_mul_f32 v{b+i}, v{b+i}, v{b+i}" for i in range(16)])
    side.add([f"v_cvt_pk_bf16_f32 v{b+i}, v{b+2*i}, v{b+2*i+1}" for i in range(8)])
    so = sHOFF0 if tt == 0 else sHOFF1
    side.add([("vm", f"buffer_store_dwordx4 {v(b,4)}, v{vL16}, {srd(SWS)}, s{so} offen offset:{2048*jf} sc1", "hst"),
              ("vm", f"buffer_store_dwordx4 {v(b+4,4)}, v{vL16}, {srd(SWS)}, s{so} offen offset:{2048*jf+1024} sc1", "hst")])
side.add([("stamp", "hstiss")])
side.add(w_item(3))
side.add(pump(1)); side.add(pump(2))
side.add([("wlg", "p1")]); side.add(w_item(4))
side.add([[("wvm", "hst"), ("vm", f"buffer_store_dword v{vTOK}, v{vZ1}, {srd(SWS)}, s{sHFL} offen sc1", "hf"), ("stamp", "hflag")]])
side.add([("wlg", "p2")]); side.add(w_item(5))
side.add(pump(3))
side.add([("wlg", "p3")]); side.add(w_item(6))
def cb_read(w2):
    b = CBF + 4 * (w2 % 3)
    E(("lg", f"ds_read_b64_tr_b16 {v(b,2)}, v{vCB} offset:{256*w2+32}", f"b{w2}"))
    E(("lg", f"ds_read_b64_tr_b16 {v(b+2,2)}, v{vCB} offset:{256*w2}", f"b{w2}"))
cb_read(0)
for sg in range(16):
    base = vCA0 if sg < 8 else vCA1
    o = 32 * (sg % 8)
    E(("lg", f"ds_read2_b64 {v(CA+4*sg,4)}, v{base} offset0:{o} offset1:{o+4}", f"a{sg}"))
    if sg == 3: cb_read(1)
    side.fill(2)
for w2 in range(16):
    LG.wait(f"b{w2}")
    b = CBF + 4 * (w2 % 3)
    for sg in range(16 - w2):
        if w2 == 0: LG.wait(f"a{sg}")
        d = CACC + 4 * (sg + w2)
        src = "0" if w2 == 0 else v(d, 4)
        A(f"v_mfma_f32_16x16x32_bf16 {v(d,4)}, {v(CA+4*sg,4)}, {v(b,4)}, {src}")
        if w2 == 0 and sg == 15: cb_read(2)
        elif w2 > 0 and sg == 0 and w2 + 2 < 16: cb_read(w2 + 2)
        else: side.fill(CVCAP)
side.flush()
stamp("convmfma")
vHFo, vHF = 4, 5
A(f"s_lshl_b32 s{sHFA}, s{sR2}, 7")
A(f"s_mul_i32 s25, s{sWAVE}, 28")
A(f"s_add_u32 s{sHFA}, s{sHFA}, s25")
A(f"s_add_u32 s{sHFA}, s{sHFA}, {WS_HF}")
A(f"v_min_u32 v{vHFo}, 6, v{vLANE}")
A(f"v_lshlrev_b32 v{vHFo}, 2, v{vHFo}")
E(("vm", f"buffer_load_dword v{vHF}, v{vHFo}, {srd(SWS)}, s{sHFA} offen sc1", "hfl"))
A("s_nop 0")
DPP = "wave_shr:1 row_mask:0xf bank_mask:0xf bound_ctrl:0"
for lvl in (2, 1, 0):
    for t2 in range(16):
        d = CACC + 4 * t2
        A(f"v_add_f32_dpp v{d+lvl}, v{d+lvl+1}, v{d+lvl} {DPP}")
X = lambda t2, lv: CACC + 4 * t2 + lv
perm = []
for k_ in range(8):
    for lv in (1, 2, 3): perm.append(f"v_permlane32_swap_b32 v{X(2*k_,lv)}, v{X(2*k_+1,lv)}")
for m_ in range(4):
    for lv in (1, 2, 3): perm.append(f"v_permlane16_swap_b32 v{X(4*m_+1,lv)}, v{X(4*m_+3,lv)}")
for m_ in range(3):
    for lv in (1, 2, 3):
        perm.append(f"v_mov_b32_dpp v{X(15,lv)}, v{X(4*m_+3,lv)} row_shl:{12-4*m_} row_mask:0xf bank_mask:{1<<m_:#x}")
for t2 in range(16):
    E(("lg", f"ds_write_b32 v{vYW}, v{CACC+4*t2} offset:{512*t2}", "yw"))
    for _ in range(3):
        if perm: A(perm.pop(0))
A("s_mov_b32 exec_lo, 0x88888888")
A("s_mov_b32 exec_hi, 0x88888888")
E(("lg", f"ds_write_b128 v{vCW}, {v(CACC+60,4)}", "yw"))
A("s_mov_b64 exec, -1")
CT = 16
A(f"s_lshl_b32 s24, s{sWR}, 13")
A(f"s_lshl_b32 s25, s{sWC}, 12")
A("s_add_u32 s25, s25, s24")
A(f"s_add_u32 s25, s25, {YL0}")
A(f"v_lshl_add_u32 v{CT}, v{vLANE}, 5, s25")
A(f"v_lshrrev_b32 v{CT+2}, 3, v{vLANE}")
A(f"s_lshl_b32 s25, s{sWC}, 4")
A(f"v_add_u32 v{CT+2}, s25, v{CT+2}")
A(f"v_lshlrev_b32 v{CT+2}, 4, v{CT+2}")
A(f"v_add_u32 v{CT+1}, 128, v{CT+2}")
A(f"v_and_b32 v{CT+3}, 7, v{vLANE}")
A(f"v_cmp_eq_u32 vcc, 0, v{CT+3}")
A(f"s_mul_i32 s26, s{sWR}, 544")
A(f"s_add_u32 s26, s26, {CARRY}")
A(f"v_cndmask_b32 v{CT+2}, 0, v{CT+2}, vcc")
A(f"v_cndmask_b32 v{CT+1}, 0, v{CT+1}, vcc")
A(f"v_add_u32 v{CT+2}, s26, v{CT+2}")
A(f"v_add_u32 v{CT+1}, s26, v{CT+1}")
A(f"s_lshl_b32 s24, s{sWC}, 11")
A(f"s_add_u32 s24, s24, s{sCHO}")
A(f"s_add_u32 s24, s24, {WS_YT}")
LG.waitall()
A("s_barrier")
Y = 48; CY = 64; YP = 72
for i in range(2):
    E(("lg", f"ds_read_b128 {v(Y+8*i,4)}, v{CT} offset:{2048*i}", f"y{i}"))
    E(("lg", f"ds_read_b128 {v(Y+8*i+4,4)}, v{CT} offset:{2048*i+16}", f"y{i}"))
    E(("lg", f"ds_read_b128 {v(CY+4*i,4)}, v{CT+2-i}", f"y{i}"))
EE = 20
vXO, vYFo, vYF, vYD, vYR, vXD = 6, 7, 8, 9, 10, 11
XV, B2V, KDV, YV = 80, 88, 96, 248
XF, BF, SF, KF = 176, 192, 208, 224
RT = 240
A(f"v_and_b32 v{EE}, 31, v{vLANE}")
A(f"v_lshrrev_b32 v{EE+1}, 5, v{vLANE}")
A(f"s_lshl_b32 s{sG0}, s{sR2}, 1")
A(f"s_add_u32 s{sG0}, s{sG0}, s{sWC}")
A(f"s_mul_i32 s{sXO}, s{sG0}, 28672")
A(f"s_lshl_b32 s{sG1}, s{sC2}, 1")
A(f"s_add_u32 s{sG1}, s{sG1}, s{sWR}")
A(f"s_lshl_b32 s26, s{sG1}, 6")
A(f"s_add_u32 s{sXO}, s{sXO}, s26")
A(f"s_lshl_b32 s{sXS}, s{sWAVE}, 12")
A(f"s_add_u32 s{sXS}, s{sXS}, {XS}")
A(f"v_lshrrev_b32 v{EE+2}, 2, v{vLANE}")
A(f"v_mul_u32_u24 v{vXD}, 896, v{EE+2}")
A(f"v_lshl_add_u32 v{vXD}, v{vq}, 4, v{vXD}")
A(f"v_lshl_add_u32 v{EE+3}, v{EE+1}, 3, s26")
for i in range(2):
    LG.wait(f"y{i}")
    for c_ in range(3): A(f"v_add_f32 v{Y+8*i+c_}, v{Y+8*i+c_}, v{CY+4*i+1+c_}")
    for c_ in range(4): A(f"v_cvt_pk_bf16_f32 v{YP+4*i+c_}, v{Y+8*i+2*c_}, v{Y+8*i+2*c_+1}")
    E(("vm", f"buffer_store_dwordx4 {v(YP+4*i,4)}, v{vL16}, {srd(SWS)}, s24 offen offset:{1024*i} sc1", "yst"))
stamp("ystiss")
A(f"s_add_u32 m0, s{sXS}, 2048")
A(f"s_add_u32 s5, s{sXO}, {16*896-1024}")
E(("vm", f"buffer_load_dwordx4 v{vXD}, {srd(SX)}, s{sXO} offen lds", "ex"))
E(("vm", f"buffer_load_dwordx4 v{vXD}, {srd(SX)}, s5 offen offset:1024 lds", "ex"))
for j in range(4):
    E(("vm", f"global_load_dwordx2 {v(B2V+2*j,2)}, v{EE+3}, s[{pB2}:{pB2+1}] offset:{16*j}", "ex"))
A(f"s_xor_b32 s26, s{sG0}, 1")
A(f"s_mul_i32 s27, s{sG0}, 114688")
A("s_mul_i32 s26, s26, 114688")
A(f"s_mul_i32 s5, s{sWAVE}, 28672")
A(f"s_add_u32 s5, s5, {WS_H}")
A(f"s_add_u32 s{sHOFF0}, s27, s5")
A(f"s_add_u32 s{sHOFF1}, s26, s5")

C("GEMM2")
VM.wait("hfl")
LB("L_hf")
A(f"v_cmp_ne_u32 vcc, s{sTOK}, v{vHF}")
A("s_cbranch_vccz L_hf_ok")
EM(spin_guard("L_hf_ok"))
A(f"buffer_load_dword v{vHF}, v{vHFo}, {srd(SWS)}, s{sHFA} offen sc1")
A("s_waitcnt vmcnt(0)")
A("s_branch L_hf")
LB("L_hf_ok")
stamp("hfok")
HBUF = [v(112 + 4 * i, 4) for i in range(16)] + [a(224 + 4 * i, 4) for i in range(8)]
assert NB <= len(HBUF)
def h_load(n):
    ks, jt = n // 2, n % 2
    so = sHOFF0 if jt == 0 else sHOFF1
    if ks % 4 == 0 and ks > 0:
        A(f"s_add_u32 s{so}, s{so}, 4096")
    E(("vm", f"buffer_load_dwordx4 {HBUF[n % NB]}, v{vL16}, {srd(SWS)}, s{so} offen offset:{1024*(ks%4)} sc1", f"h{n}"))
for n in range(PRIME): h_load(n)
nxt = PRIME
vNM, vRS, vRS2, vRL = 24, 25, 26, 27
pre = pump(4) + [
    f"v_lshl_add_u32 v{EE+3}, v{EE+1}, 2, v{vr}", f"v_and_b32 v{T}, 1, v{vG}" if False else f"v_and_b32 v{vRL}, 1, v{vG}",
    f"v_lshlrev_b32 v{vYR}, 6, v{EE+3}", f"v_lshl_add_u32 v{vYR}, v{vRL}, 5, v{vYR}", f"v_lshl_add_u32 v{vYR}, v{vq}, 3, v{vYR}",
    f"v_add_u32 v{vYR}, s{sXS}, v{vYR}",
    f"v_lshlrev_b32 v{vRL}, 11, v{vRL}", f"v_lshl_add_u32 v{vRL}, v{EE+3}, 5, v{vRL}", f"v_lshl_add_u32 v{vRL}, v{vq}, 3, v{vRL}",
    f"s_lshl_b32 s26, s{sWC}, 12", f"s_lshl_b32 s5, s{sWR}, 10", "s_add_u32 s26, s26, s5", f"s_add_u32 s26, s26, {KVD}",
    f"v_add_u32 v{vRL}, s26, v{vRL}"]
pre += [("lg", f"ds_read_b64_tr_b16 {v(KDV+2*j,2)}, v{vRL} offset:{256*j}", "kd") for j in range(4)]
pre += [f"v_lshlrev_b32 v{EE+3}, 6, v{EE}", f"v_lshl_add_u32 v{EE+3}, v{EE+1}, 3, v{EE+3}", f"v_add_u32 v{EE+3}, s{sXS}, v{EE+3}",
        f"s_lshr_b32 s24, s{sCHO}, 10", f"s_mul_i32 s25, s{sWC}, 1792", "s_add_u32 s24, s24, s25", f"s_add_u32 s24, s24, {WS_YF}",
        ("wvm", "ex"),
        ("vm", f"buffer_store_dword v{vTOK}, v{vZ1}, {srd(SWS)}, s24 offen sc1", "yf")]
pre += [("lg", f"ds_read_b64 {v(XV+2*j,2)}, v{EE+3} offset:{2048+16*j}", "xv") for j in range(4)]
pre += [("wlg", "kd")]
for i in range(8):
    pre += [f"v_lshlrev_b32 v{BF+2*i}, 16, v{B2V+i}", f"v_and_b32 v{BF+2*i+1}, s{sMASK}, v{B2V+i}",
            f"v_lshlrev_b32 v{KF+2*i}, 16, v{KDV+i}", f"v_and_b32 v{KF+2*i+1}, s{sMASK}, v{KDV+i}"]
pre += [("wlg", "xv")]
for i in range(8):
    pre += [f"v_lshlrev_b32 v{XF+2*i}, 16, v{XV+i}", f"v_and_b32 v{XF+2*i+1}, s{sMASK}, v{XV+i}"]
for i, it in enumerate(pre):
    E(it)
    if i % 8 == 7 and nxt < NB: h_load(nxt); nxt += 1
stamp("pre")
side = Side()
side.add(pump(5)); side.add(pump(6))
side.add([f"v_lshlrev_b32 v{vNM}, 16, v{vST}", f"v_and_b32 v{vRS}, s{sMASK}, v{vST+1}", f"v_rcp_f32 v{vRS}, v{vRS}",
          f"v_mul_u32_u24 v{vXO}, 896, v{EE}", f"v_lshl_add_u32 v{vXO}, v{EE+1}, 4, v{vXO}",
          f"v_mul_f32 v{vRS2}, v{vRS}, v{vRS}", f"v_mul_f32 v{vNM}, v{vNM}, v{vRS}",
          f"s_lshr_b32 s26, s{sR2}, 4", "s_mul_i32 s26, s26, 1792", f"s_lshl_b32 s5, s{sG1}, 7", f"s_add_u32 s{sYF}, s26, s5",
          f"s_add_u32 s{sYF}, s{sYF}, {WS_YF}", f"v_lshlrev_b32 v{vYFo}, 2, v{EE}",
          f"v_lshlrev_b32 v{vYD}, 12, v{EE+2}", f"v_lshl_add_u32 v{vYD}, v{vq}, 4, v{vYD}",
          f"s_lshl_b32 s{sYD}, s{sG1}, 17", f"s_lshl_b32 s26, s{sG0}, 6", f"s_add_u32 s{sYD}, s{sYD}, s26",
          f"s_add_u32 s{sYD}, s{sYD}, {WS_YT}"])
side.add([f"v_fma_f32 v{SF+i}, v{XF+i}, v{vRS}, v{vNM}" for i in range(16)])
for j in range(1, 4):
    side.add([f"s_xor_b32 s25, s{sWAVE}, {j}", "s_mul_i32 s25, s25, 12288", f"s_add_u32 s25, s25, {4096*(j-1)}",
              f"v_add_u32 v{12+j}, s25, v{vL16}"])
side.add([f"s_mul_i32 s25, s{sWAVE}, 12288", f"v_add_u32 v12, s25, v{vL16}",
          f"v_mul_f32 v{vRL}, 0xbfb8aa3b, v{vRS2}"])
side.add([[("wlgall",), "s_barrier"]])
late = []
for i in range(8):
    late += [f"v_lshlrev_b32 v{RT}, 16, v{YV+i}", f"v_and_b32 v{RT+1}, s{sMASK}, v{YV+i}",
             f"v_add_f32 v{KF+2*i}, v{KF+2*i}, v{RT}", f"v_add_f32 v{KF+2*i+1}, v{KF+2*i+1}, v{RT+1}"]
late += [f"v_mul_f32 v{SF+i}, v{SF+i}, v{KF+i}" for i in range(16)]
late += [f"v_mul_f32 v{KF+i}, 0xbfb8aa3b, v{BF+i}" for i in range(16)]
N_YPOLL = int(opts.get("ypoll", "16"))
N_YCHK = int(opts.get("ychk", "40"))
N_YRD = int(opts.get("yrd", "50"))
for ks in range(28):
    if ks % 4 == 0 and ks >= 16: LG.wait(f"p{ks//4}")
    for jt in range(2):
        n = 2 * ks + jt
        VM.wait(f"h{n}")
        hb = HBUF[n % NB]
        for jd in range(2):
            d = ACC + 16 * (2 * jd + jt)
            src = "0" if ks == 0 else v(d, 16)
            A(f"v_mfma_f32_32x32x16_bf16 {v(d,16)}, {a(8*ks+4*jd,4)}, {hb}, {src}")
            if side.q: side.fill(3)
            elif n > N_YRD:
                LG.waitall()
                for _ in range(5):
                    if late: A(late.pop(0))
            if jd == 0 and nxt < min(56, n + NB): h_load(nxt); nxt += 1
        if n == N_YPOLL:
            assert not side.q
            E(("vm", f"buffer_load_dword v{vYF}, v{vYFo}, {srd(SWS)}, s{sYF} offen sc1", "yfl"))
        if n == N_YCHK:
            VM.wait("yfl")
            LB("L_yf")
            A(f"v_cmp_ne_u32 vcc, s{sTOK}, v{vYF}")
            A("s_cbranch_vccz L_yf_ok")
            EM(spin_guard("L_yf_ok"))
            A(f"buffer_load_dword v{vYF}, v{vYFo}, {srd(SWS)}, s{sYF} offen sc1")
            A("s_waitcnt vmcnt(0)")
            A("s_branch L_yf")
            LB("L_yf_ok")
            A(f"s_mov_b32 m0, s{sXS}")
            A(f"s_add_u32 s24, s{sYD}, {65536-1024}")
            E(("vm", f"buffer_load_dwordx4 v{vYD}, {srd(SWS)}, s{sYD} offen sc1 lds", "yd"))
            E(("vm", f"buffer_load_dwordx4 v{vYD}, {srd(SWS)}, s24 offen offset:1024 sc1 lds", "yd"))
        if nxt < min(56, n + 1 + NB): h_load(nxt); nxt += 1
        if n == N_YRD:
            VM.wait("yd")
            for j in range(4):
                E(("lg", f"ds_read_b64_tr_b16 {v(YV+2*j,2)}, v{vYR} offset:{512*j}", "yv"))
assert nxt == 56
stamp("g2done")
C("reduction")
A("s_nop 7")
for j in (2, 1, 3):
    for i in range(4):
        E(("lg", f"ds_write_b128 v{12+j}, {v(ACC+16*j+4*i,4)} offset:{1024*i}", "rw"))
        for _ in range(2):
            if late: A(late.pop(0))
for s_ in late: A(s_)
LG.waitall()
A("s_barrier")
RD = 112
for j in range(3):
    for i in range(4):
        E(("lg", f"ds_read_b128 {v(RD+16*j+4*i,4)}, v12 offset:{4096*j+1024*i}", f"r{j}"))
for j in range(3):
    LG.wait(f"r{j}")
    for i in range(8):
        A(f"v_pk_add_f32 {v(ACC+2*i,2)}, {v(ACC+2*i,2)}, {v(RD+16*j+2*i,2)}")
stamp("reduced")
C("final epilogue")
O = ACC
for i in range(16): A(f"v_fmac_f32 v{KF+i}, v{O+i}, v{vRL}")
for i in range(16): A(f"v_exp_f32 v{KF+i}, v{KF+i}")
for i in range(16): A(f"v_fmac_f32 v{BF+i}, v{O+i}, v{vRS2}")
for i in range(16): A(f"v_add_f32 v{KF+i}, 1.0, v{KF+i}")
for i in range(16): A(f"v_rcp_f32 v{KF+i}, v{KF+i}")
for i in range(16): A(f"v_mul_f32 v{SF+i}, v{SF+i}, v{BF+i}")
for i in range(16): A(f"v_fmac_f32 v{XF+i}, v{SF+i}, v{KF+i}")
for i in range(8): A(f"v_cvt_pk_bf16_f32 v{RT+i}, v{XF+2*i}, v{XF+2*i+1}")
A("s_nop 1")
for pr in range(2):
    A(f"v_permlane32_swap_b32 v{RT+4*pr}, v{RT+4*pr+2}")
    A(f"v_permlane32_swap_b32 v{RT+4*pr+1}, v{RT+4*pr+3}")
A("s_nop 1")
for pr in range(2):
    A(f"buffer_store_dwordx4 {v(RT+4*pr,4)}, v{vXO}, {srd(SOUT)}, s{sXO} offen offset:{32*pr}")
if TS:
    stamp("outiss")
    A("s_waitcnt vmcnt(0)")
    stamp("end")
    A("s_waitcnt lgkmcnt(0)")
    k = len(ts_names)
    for i in range(max(0, k - 3), k):
        A(f"v_writelane_b32 v{vTSR}, s{sTS0+2*(i%4)}, {i}")
    A(f"s_lshl_b32 s24, s{sJ}, 2")
    A(f"s_add_u32 s24, s24, s{sWAVE}")
    A("s_lshl_b32 s24, s24, 8")
    A(f"s_add_u32 s24, s24, {WS_TS}")
    A(f"v_lshlrev_b32 v10, 2, v{vLANE}")
    A(f"buffer_store_dword v{vTSR}, v10, {srd(SWS)}, s24 offen")
    L.insert(0, "; TSNAMES " + ",".join(ts_names))
LB("L_end")
A("s_endpgm")

LB("L_helper")
for reg, off in ((SDBG, 96), (SWS, 104), (pB1, 64)):
    A(f"s_load_dwordx2 s[{reg}:{reg+1}], s[0:1], {off}")
A(f"s_memrealtime s[{sTMP64}:{sTMP64+1}]")
A(f"s_getpc_b64 s[{sHOFF0}:{sHOFF0+1}]")
LB("L_pc")
A(f"s_sub_u32 s{sHOFF0}, s{sHOFF0}, L_pc-{KNAME}")
A(f"s_subb_u32 s{sHOFF1}, s{sHOFF1}, 0")
A(f"v_lshlrev_b32 v{T1}, 4, v0")
NPF = 6
for i in range(NPF):
    A(f"global_load_dwordx4 {v(T1+4,4)}, v{T1}, s[{sHOFF0}:{sHOFF0+1}]")
    if i < NPF - 1: A(f"v_add_u32 v{T1}, 4096, v{T1}")
A(f"s_mov_b32 s{sR}, s2")
A(f"s_sub_u32 s{sC}, s2, 16")
EM(srd_consts(((GA, 1835008), (GB, 1605632))))
EM(da_db())
EM(common_consts())
A(f"s_mov_b32 s{sONES}, 0x3f803f80")
A(f"s_movk_i32 s{sDA}, 128")
A(f"s_mov_b32 s{sSLOT}, 0")
A("s_waitcnt lgkmcnt(0)")
A(f"s_or_b32 s5, s2, s{sWAVE}")
A("s_cmp_lg_u32 s5, 0")
A("s_cbranch_scc1 L_notok")
A(f"s_or_b32 s5, s{sTMP64}, 1")
A(f"v_mov_b32 v{vTOK}, s5")
A(f"buffer_store_dword v{vTOK}, v{vZ1}, {srd(SDBG)}, 0 offen sc1")
LB("L_notok")
A("s_cmp_lt_u32 s2, 16")
A("s_cbranch_scc1 L_hs_sel")
A(f"s_mov_b64 s[{GA}:{GA+1}], s[{GB}:{GB+1}]")
A(f"s_mov_b32 s{GA+2}, 1605632")
for g in range(4): A(f"v_mov_b32 v{vDA+g}, v{vDB+g}")
A(f"s_mov_b32 s{sA}, s{sB}")
A(f"s_mov_b32 s{sDA}, {64*3584}")
LB("L_hs_sel")
A(f"s_mov_b32 s{sCNT}, 0")
LB("L_h_pre")
A(f"s_add_u32 m0, s{sSLOT}, s{sOA}")
A(f"s_add_u32 s{sSLOT}, s{sSLOT}, 16384")
for g in range(4):
    A(f"buffer_load_dwordx4 v{vDA+g}, {srd(GA)}, s{sA} offen offset:{1024*g} lds")
A(f"s_add_u32 s{sA}, s{sA}, s{sDA}")
A(f"s_add_u32 s{sCNT}, s{sCNT}, 1")
A(f"s_cmp_lt_u32 s{sCNT}, 7")
A("s_cbranch_scc1 L_h_pre")
A(f"buffer_load_dword v{vTOK}, v{vZ1}, {srd(SDBG)}, 0 offen sc1")
HA = 48
for i in range(8): A(f"v_mov_b32 v{HA+i}, 0")
A("s_cmp_lt_u32 s2, 16")
A("s_cbranch_scc0 L_hcs")
A(f"v_and_b32 v{TMP}, 31, v{vLANE}")
A(f"v_lshrrev_b32 v{TMP+1}, 5, v{vLANE}")
A(f"v_bfe_u32 v{TMP+2}, v{vLANE}, 1, 3")
A(f"v_xor_b32 v{TMP+1}, v{TMP+1}, v{TMP+2}")
A(f"v_lshlrev_b32 v{TMP+1}, 4, v{TMP+1}")
A(f"v_lshl_add_u32 v{TMP+1}, v{TMP}, 7, v{TMP+1}")
A(f"v_add_u32 v{vRX}, s{sOA}, v{TMP+1}")
for s in range(1, 4): A(f"v_xor_b32 v{vRX+s}, {32*s}, v{vRX}")
for c in range(7):
    A(f"s_waitcnt vmcnt({25-4*c})")
    if c == 4:
        for s in range(4): A(f"v_add_u32 v{vRX+s}, 65536, v{vRX+s}")
    for s in range(4): A(f"ds_read_b128 {v(FA+4*s,4)}, v{vRX+s} offset:{16384*(c%4)}")
    for s in range(4):
        A(f"s_waitcnt lgkmcnt({3-s})")
        for n in range(4):
            A(f"v_dot2c_f32_bf16 v{HA+(n&1)}, s{sONES}, v{FA+4*s+n}")
            A(f"v_dot2c_f32_bf16 v{HA+2+(n&1)}, v{FA+4*s+n}, v{FA+4*s+n}")
vSUM, vSQ = HA, HA + 2
HG = 64
A("s_nop 2")
A(f"v_add_f32 v{vSUM}, v{HA}, v{HA+1}")
A(f"v_add_f32 v{vSQ}, v{HA+2}, v{HA+3}")
A(f"v_mov_b32 v{HA+4}, v{vSUM}")
A(f"v_mov_b32 v{HA+5}, v{vSQ}")
A("s_nop 1")
A(f"v_permlane32_swap_b32 v{vSUM}, v{HA+4}")
A(f"v_permlane32_swap_b32 v{vSQ}, v{HA+5}")
A("s_nop 1")
A(f"v_add_f32 v{vSUM}, v{vSUM}, v{HA+4}")
A(f"v_add_f32 v{vSQ}, v{vSQ}, v{HA+5}")
INV = 0x3b124925
A(f"v_mul_f32 v{vSUM}, {INV:#x}, v{vSUM}")
A(f"v_mul_f32 v{vSQ}, {INV:#x}, v{vSQ}")
A(f"v_fma_f32 v{vSQ}, -v{vSUM}, v{vSUM}, v{vSQ}")
A(f"v_max_f32 v{vSQ}, 0, v{vSQ}")
A(f"v_cvt_pk_bf16_f32 v{vSQ}, v{vSQ}, v{vSQ}")
A(f"v_lshlrev_b32 v{vSQ}, 16, v{vSQ}")
A(f"v_add_f32 v{vSQ}, 0x3727c5ac, v{vSQ}")
A(f"v_cvt_pk_bf16_f32 v{vSQ}, v{vSQ}, v{vSQ}")
A(f"v_lshlrev_b32 v{vSQ}, 16, v{vSQ}")
A(f"v_sqrt_f32 v{vSQ}, v{vSQ}")
A("s_waitcnt vmcnt(0)")
EM(get_token("s"))
A(f"v_cvt_pk_bf16_f32 v{HG}, -v{vSUM}, -v{vSUM}")
A(f"v_cvt_pk_bf16_f32 v{HG+1}, -v{vSUM}, v{vSQ}")
A(f"v_mov_b32 v{HG+2}, 0")
A(f"v_mov_b32 v{HG+3}, v{vTOK}")
A(f"v_lshlrev_b32 v{TMP}, 4, v{TMP}")
A(f"s_lshl_b32 s24, s{sR}, 2")
A(f"s_add_u32 s24, s24, s{sWAVE}")
A("s_lshl_b32 s24, s24, 9")
A(f"s_add_u32 s24, s24, {WS_STAT}")
A(f"buffer_store_dwordx4 {v(HG,4)}, v{TMP}, {srd(SWS)}, s24 offen sc1")
A("s_endpgm")
LB("L_hcs")
A(f"v_lshlrev_b32 v{TMP}, 6, v{vr}")
A(f"v_lshl_add_u32 v{TMP}, v{vr}, 8, v{TMP}")
A(f"v_lshrrev_b32 v{TMP+1}, 1, v{vG}")
A(f"v_lshl_add_u32 v{TMP}, v{TMP+1}, 11, v{TMP}")
A(f"v_and_b32 v{TMP+1}, 1, v{vG}")
A(f"v_lshl_add_u32 v{TMP}, v{TMP+1}, 5, v{TMP}")
A(f"v_lshl_add_u32 v{TMP}, v{vq}, 3, v{TMP}")
A(f"v_add_u32 v{vRX}, s{sOA}, v{TMP}")
for ft in range(1, 4): A(f"v_xor_b32 v{vRX+ft}, {64*ft}, v{vRX}")
A(f"v_and_b32 v{TMP+2}, 127, v0")
A(f"s_lshl_b32 s24, s{sC}, 8")
A(f"v_lshl_add_u32 v{TMP+3}, v{TMP+2}, 1, s24")
A(f"global_load_ushort v{vDv}, v{TMP+3}, s[{pB1}:{pB1+1}]")
for c in range(7):
    A(f"s_waitcnt vmcnt({26-4*c})")
    if c == 4:
        for s in range(4): A(f"v_add_u32 v{vRX+s}, 65536, v{vRX+s}")
    for ft in range(4):
        A(f"ds_read_b64_tr_b16 {v(FA+4*ft,2)}, v{vRX+ft} offset:{16384*(c%4)}")
        A(f"ds_read_b64_tr_b16 {v(FA+4*ft+2,2)}, v{vRX+ft} offset:{16384*(c%4)+1024}")
    for ft in range(4):
        A(f"s_waitcnt lgkmcnt({6-2*ft})")
        for n in range(4):
            A(f"v_dot2c_f32_bf16 v{HA+ft}, s{sONES}, v{FA+4*ft+n}")
A(f"v_lshlrev_b32 v{TMP}, 2, v{vLANE}")
A(f"s_lshl_b32 s24, s{sWAVE}, 10")
A("s_add_u32 s24, s24, 131072")
A(f"v_add_u32 v{TMP}, s24, v{TMP}")
for ft in range(4): A(f"ds_write_b32 v{TMP}, v{HA+ft} offset:{256*ft}")
A(f"v_lshrrev_b32 v{TMP+1}, 5, v{TMP+2}")
A(f"v_and_b32 v{TMP+3}, 31, v{TMP+2}")
A(f"v_lshlrev_b32 v{TMP+3}, 2, v{TMP+3}")
A(f"v_lshl_add_u32 v{TMP+1}, v{TMP+1}, 8, v{TMP+3}")
A(f"v_add_u32 v{TMP+1}, 131072, v{TMP+1}")
A("s_waitcnt lgkmcnt(0)")
A("s_barrier")
for w in range(4):
    A(f"ds_read2_b32 {v(FA+2*w,2)}, v{TMP+1} offset0:0 offset1:32")
    if w < 3: A(f"v_add_u32 v{TMP+1}, 1024, v{TMP+1}")
A("s_waitcnt vmcnt(0) lgkmcnt(0)")
EM(get_token("c"))
for i in range(1, 8): A(f"v_add_f32 v{FA}, v{FA}, v{FA+i}")
vCS = FA
A(f"v_cvt_pk_bf16_f32 v{HG}, v{vCS}, v{vCS}")
A(f"v_lshlrev_b32 v{TMP}, 16, v{HG}")
A(f"v_sub_f32 v{TMP}, v{vCS}, v{TMP}")
A(f"v_cvt_pk_bf16_f32 v{HG}, v{vCS}, v{TMP}")
A(f"v_and_b32 v{TMP+1}, s{sMASK}, v{HG}")
A(f"v_sub_f32 v{TMP}, v{TMP}, v{TMP+1}")
A(f"v_lshlrev_b32 v{TMP+1}, 16, v{vDv}")
A(f"v_cvt_pk_bf16_f32 v{HG+1}, v{TMP}, v{TMP+1}")
A(f"v_mov_b32 v{HG+2}, 0")
A(f"v_mov_b32 v{HG+3}, v{vTOK}")
A(f"v_lshlrev_b32 v{TMP}, 4, v{TMP+2}")
A(f"s_lshl_b32 s24, s{sC}, 11")
A(f"s_add_u32 s24, s24, {WS_CS}")
A(f"buffer_store_dwordx4 {v(HG,4)}, v{TMP}, {srd(SWS)}, s24 offen sc1")
A("s_endpgm")

L.append(f""".fill 4096, 4, 0xbf800000
.section .rodata,"a"
.p2align 6
.amdhsa_kernel {KNAME}
  .amdhsa_next_free_vgpr 512
  .amdhsa_next_free_sgpr 102
  .amdhsa_accum_offset 256
  .amdhsa_group_segment_fixed_size 0
  .amdhsa_kernarg_size 112
  .amdhsa_user_sgpr_count 2
  .amdhsa_user_sgpr_kernarg_segment_ptr 1
  .amdhsa_system_sgpr_workgroup_id_x 1
.end_amdhsa_kernel
""")
open(sys.argv[1], "w").write("\n".join(L))
```

```python
import sys

opts = dict(a.split("=") for a in sys.argv[2:])
TS = int(opts.get("ts", "0"))
NB = int(opts.get("nb", "24"))
PRIME = int(opts.get("prime", "10"))
G1CAP = int(opts.get("g1cap", "2"))
CVCAP = int(opts.get("cvcap", "3"))
HSC = "" if opts.get("hplain") else "sc1"
KNAME = "recurrent_scan__ssm_conv_h3__dense_activation_squared_relu__prompt_kernel"

WS_KVF, WS_YF, WS_HF, WS_STAT, WS_CS = 0x0000, 0x0400, 0x2000, 0x4000, 0xC000
WS_TS, WS_KVT, WS_YT, WS_H, WS_SIZE = 0x20000, 0x100000, 0x300000, 0x500000, 0x10000000
WS_WP = 0xC00000
NH = 30
NWG = 224 + NH
LDS_BYTES = 163840
KVD = 131072
STG = 139264
KVL = 139264
HL = 147712
CARRY = 156416
YL0 = 98304
XS = 114688

L = []
def A(s): L.append("    " + s)
def LB(s): L.append(s + ":")
def C(s): L.append("    ; " + s)

class Q:
    def __init__(self, name, maxn):
        self.q = []; self.name = name; self.maxn = maxn; self.total = 0
    def push(self, tag): self.q.append(tag); self.total += 1
    def count(self, tag):
        if tag not in self.q: return None
        idx = max(i for i, t in enumerate(self.q) if t == tag)
        return min(len(self.q) - 1 - idx, self.maxn)
    def wait(self, tag):
        n = self.count(tag)
        if n is None: return
        A(f"s_waitcnt {self.name}({n})")
        self.q = self.q[len(self.q) - n:] if n else []
    def waitall(self):
        if self.q: A(f"s_waitcnt {self.name}(0)")
        self.q = []
    def set(self, lst): self.q = list(lst)
VM = Q("vmcnt", 63)
LG = Q("lgkmcnt", 15)

def E(it):
    if isinstance(it, str): A(it)
    elif isinstance(it, list):
        for x in it: E(x)
    elif it[0] == "vm": A(it[1]); VM.push(it[2])
    elif it[0] == "lg": A(it[1]); LG.push(it[2])
    elif it[0] == "wvm": VM.wait(it[1])
    elif it[0] == "wlg": LG.wait(it[1])
    elif it[0] == "wlgall": LG.waitall()
    elif it[0] == "lb": LB(it[1])
    elif it[0] == "stamp": stamp(it[1])
    elif it[0] == "mark": marks[it[1]] = VM.total
    else: raise ValueError(it)
marks = {}
def EM(lst):
    for x in lst: E(x)
class Side:
    def __init__(self): self.q = []
    def add(self, items): self.q += items
    def fill(self, n):
        while n > 0 and self.q:
            it = self.q.pop(0)
            E(it)
            if not (isinstance(it, tuple) and it[0] in ("mark", "stamp")): n -= 1
    def until(self, name):
        while name not in marks: E(self.q.pop(0))
    def flush(self):
        while self.q: E(self.q.pop(0))

sWAVE, sMASK = 3, 4
sR, sC, sR2, sC2, sWR, sWC = 6, 7, 8, 9, 10, 11
sA, sB, sWa, sWb = 12, 13, 14, 15
pSHK, pD, pB1, pB2 = 16, 18, 20, 22
sCNT, sFLG, sOA, sOB = 28, 29, 30, 31
sTOK, sONES, sHOFF0, sHOFF1 = 32, 33, 34, 35
sLO32, sTMP64, sSPIN, sW2M0, sSTG, sSLOT = 36, 38, 40, 41, 42, 43
GA, GB, SW2, SWS, SK, SV, SH, SOUT, SDBG = 44, 48, 52, 56, 60, 64, 68, 72, 76
SX = GA
sG0, sG1, sG2, sKFA = 80, 81, 82, 83
sTS0 = 84
sXO, sYF, sYD, sJ, sCHO, sHFA, sHFL, sDA = 92, 93, 94, 95, 96, 97, 98, 99
sRHO, sWEND = 100, 101
ROT = int(opts.get('rot', '1'))
sXS = sSTG
def srd(r): return f"s[{r}:{r+3}]"

vLANE, vL16, vTSR = 1, 2, 3
vDA, vDB, vDR = 4, 8, 12
vRX, vRXh, vRW, vRWh = 16, 20, 24, 26
vG, vr, vq, vZ1 = 28, 29, 30, 31
vTOK, vDv, vST, vKFo, vKF, vPW = 32, 33, 34, 36, 37, 38
vCA0, vCA1, vCB, vYW, vCW, vGO = 42, 43, 44, 45, 46, 47
ACC = 48
FA, FB = 112, 128
T1 = 144
TMP = 176
GR = 176
CA, CACC, CBF = 112, 176, 240
vZ = 252
def v(r, n=1): return f"v{r}" if n == 1 else f"v[{r}:{r+n-1}]"
def a(r, n=1): return f"a{r}" if n == 1 else f"a[{r}:{r+n-1}]"

ts_names = []
def stamp(name):
    if not TS: return
    k = len(ts_names)
    if k >= 3:
        A(f"v_writelane_b32 v{vTSR}, s{sTS0+2*((k-3)%4)}, {k-3}")
    A(f"{'s_memtime' if opts.get('cyc') else 's_memrealtime'} s[{sTS0+2*(k%4)}:{sTS0+2*(k%4)+1}]")
    ts_names.append(name)

def spin_guard(ok):
    return [f"s_cmp_eq_u32 s{sSPIN}, 0", f"s_cbranch_scc1 {ok}", f"s_sub_u32 s{sSPIN}, s{sSPIN}, 1"]
slow = []
def check_flag(name, reg, reload_, extra=None):
    slow.append([("lb", f"L_s{name}")] + spin_guard(f"L_r{name}") + reload_ + ["s_waitcnt vmcnt(0)", f"s_branch L_c{name}"])
    return [("lb", f"L_c{name}"), f"v_cmp_ne_u32 vcc, s{sTOK}, v{reg}"] + (extra or []) + \
           ([f"s_cbranch_vccnz L_s{name}"] if not extra else ["s_cmp_lg_u64 vcc, 0", f"s_cbranch_scc1 L_s{name}"]) + [("lb", f"L_r{name}")]
def get_token_fast(tag):
    slow.append([("lb", f"L_stok{tag}")] + spin_guard(f"L_rtok{tag}") +
                ["s_sleep 2", f"buffer_load_dword v{vTOK}, v{vZ1}, {srd(SDBG)}, 0 offen sc1", "s_waitcnt vmcnt(0)", f"s_branch L_ctok{tag}"])
    return [("lb", f"L_ctok{tag}"), f"v_readfirstlane_b32 s{sTOK}, v{vTOK}", f"s_cmp_eq_u32 s{sTOK}, 0",
            f"s_cbranch_scc1 L_stok{tag}", ("lb", f"L_rtok{tag}")]
def get_token(tag):
    return [("lb", f"L_tok{tag}"), f"v_readfirstlane_b32 s{sTOK}, v{vTOK}", f"s_cmp_lg_u32 s{sTOK}, 0",
            f"s_cbranch_scc1 L_tok_ok{tag}"] + spin_guard(f"L_tok_ok{tag}") + \
           ["s_sleep 2", f"buffer_load_dword v{vTOK}, v{vZ1}, {srd(SDBG)}, 0 offen sc1", "s_waitcnt vmcnt(0)",
            f"s_branch L_tok{tag}", ("lb", f"L_tok_ok{tag}")]

hdr = open("recurrent_scan__ssm_conv_h3__dense_activation_squared_relu__prompt.s.ref").read().split("\n")
for line in hdr:
    if line.startswith("; @launch"):
        L.append(f"; @launch grid=({NWG},1,1) block=(256,1,1) lds={LDS_BYTES}")
    elif line.startswith(";"):
        L.append(line)
    else:
        break
L.append(f""".amdgcn_target "amdgcn-amd-amdhsa--gfx950"
.text
.globl {KNAME}
.p2align 8
.type {KNAME},@function
{KNAME}:""")

def srd_consts(lst):
    o = []
    for r_, sz in lst:
        o += [f"s_mov_b32 s{r_+2}, {sz}", f"s_mov_b32 s{r_+3}, 0x20000"]
    return o
def da_db():
    o = [f"v_lshrrev_b32 v{TMP+2}, 1, v{TMP+4}",
         f"v_xor_b32 v{TMP+3}, v{TMP+1}, v{TMP+2}",
         f"v_lshl_add_u32 v{vDA}, v{TMP+3}, 4, v{TMP}",
         f"v_xor_b32 v{vDA+1}, 64, v{vDA}",
         f"v_add_u32 v{vDA+1}, 6144, v{vDA+1}",
         f"v_add_u32 v{vDA+2}, 12288, v{vDA}",
         f"v_add_u32 v{vDA+3}, 12288, v{vDA+1}",
         f"v_lshrrev_b32 v{vG}, 4, v{vLANE}",
         f"v_mul_u32_u24 v{TMP+2}, 3584, v{vG}",
         f"v_and_b32 v{TMP+3}, 15, v{vLANE}",
         f"v_lshlrev_b32 v{TMP+7}, 2, v{vG}",
         f"v_xor_b32 v{TMP+3}, v{TMP+3}, v{TMP+7}",
         f"v_lshl_add_u32 v{vDB}, v{TMP+3}, 4, v{TMP+2}"]
    o += [f"v_add_u32 v{vDB+g}, {13312*g}, v{vDB}" for g in range(1, 4)]
    o += [f"s_lshl_b32 s26, s{sR}, 2", f"s_add_u32 s26, s26, s{sWAVE}", f"s_mul_i32 s{sA}, s26, 28672",
          f"s_mul_i32 s{sB}, s{sWAVE}, 57344", f"s_lshl_b32 s26, s{sC}, 8", f"s_add_u32 s{sB}, s{sB}, s26",
          f"s_lshl_b32 s{sOA}, s{sWAVE}, 12", f"s_add_u32 s{sOB}, s{sOA}, 16384"]
    return o
def common_consts():
    return srd_consts(((SDBG, 256), (SWS, WS_SIZE))) + [f"v_mov_b32 v{vZ1}, 0", f"s_mov_b32 s{sMASK}, 0xffff0000",
            f"s_mov_b32 s{sSPIN}, 200000", f"v_lshlrev_b32 v{vL16}, 4, v{vLANE}",
            f"v_bfe_u32 v{vr}, v{vLANE}, 2, 2", f"v_and_b32 v{vq}, 3, v{vLANE}"]

for reg, off in ((SK, 8), (SV, 16), (pSHK, 24), (GA, 0), (GB, 56)):
    A(f"s_load_dwordx2 s[{reg}:{reg+1}], s[0:1], {off}")
stamp("start")
A(f"v_and_b32 v{vLANE}, 63, v0")
A(f"v_lshrrev_b32 v{TMP}, 6, v0")
A(f"v_lshrrev_b32 v{TMP+4}, 3, v{vLANE}")
A(f"v_readfirstlane_b32 s{sWAVE}, v{TMP}")
A(f"v_mul_u32_u24 v{TMP}, 896, v{TMP+4}")
A(f"v_and_b32 v{TMP+1}, 7, v{vLANE}")
A(f"s_sub_u32 s{sJ}, s2, {NH}")
A("s_cbranch_scc1 L_helper")
A(f"s_cmp_ge_u32 s{sJ}, 224")
A("s_cbranch_scc1 L_end")
A(f"s_and_b32 s24, s{sJ}, 7")
A(f"s_lshr_b32 s25, s{sJ}, 3")
A("s_mul_i32 s26, s25, 37")
A("s_lshr_b32 s5, s26, 8")
A("s_mul_i32 s27, s5, 7")
A(f"s_sub_u32 s{sC2}, s25, s27")
A("s_lshl_b32 s27, s24, 2")
A(f"s_add_u32 s{sR2}, s27, s5")
A(f"v_and_b32 v{TMP+2}, 2, v{TMP+4}")
A(f"v_lshlrev_b32 v{TMP+2}, 1, v{TMP+2}")
A(f"v_xor_b32 v{TMP+3}, v{TMP+1}, v{TMP+2}")
A(f"v_lshl_add_u32 v{vDR}, v{TMP+3}, 4, v{TMP}")
A(f"v_add_u32 v{vDR+1}, 6144, v{vDR}")
A(f"s_lshl_b32 s26, s{sR2}, 2")
A(f"s_add_u32 s26, s26, s{sWAVE}")
A("s_mul_i32 s27, s26, 14336")
A(f"s_lshl_b32 s25, s{sC2}, 7")
A("s_add_u32 s27, s27, s25")
A("s_sub_u32 s25, s27, 7168")
A("s_cmp_eq_u32 s26, 0")
A("s_cselect_b32 s26, 0x7fff0000, s25")
A(f"s_mul_i32 s{sSTG}, s{sWAVE}, 5120")
A(f"s_add_u32 s{sSTG}, s{sSTG}, {STG}")
EM(srd_consts(((SK, 1835008), (SV, 1835008))))
A(f"s_mov_b32 m0, s{sSTG}")
A(f"s_lshl_b32 s25, s{sC2}, 9")
A(f"v_lshl_add_u32 v{TMP+6}, v{vLANE}, 3, s25")
A("s_waitcnt lgkmcnt(0)")
E(("vm", f"buffer_load_dwordx4 v{vDR}, {srd(SK)}, s26 offen lds", "kv"))
A(f"s_add_u32 m0, s{sSTG}, 1024")
E(("vm", f"global_load_dwordx2 v[{TMP+8}:{TMP+9}], v{TMP+6}, s[{pSHK}:{pSHK+1}]", "kv"))
E(("vm", f"buffer_load_dwordx4 v{vDR}, {srd(SK)}, s27 offen lds", "kv"))
E(("vm", f"buffer_load_dwordx4 v{vDR+1}, {srd(SK)}, s27 offen offset:1024 lds", "kv"))
A(f"s_add_u32 m0, s{sSTG}, 3072")
A("s_lshr_b32 s26, s24, 1")
E(("vm", f"buffer_load_dwordx4 v{vDR}, {srd(SV)}, s27 offen lds", "kv"))
E(("vm", f"buffer_load_dwordx4 v{vDR+1}, {srd(SV)}, s27 offen offset:1024 lds", "kv"))
stamp("kviss")
for reg, off in ((pD, 40), (SDBG, 96), (SWS, 104), (SW2, 72), (SH, 32), (pB2, 80), (SOUT, 88)):
    A(f"s_load_dwordx2 s[{reg}:{reg+1}], s[0:1], {off}")
if opts.get("map") == "2x14":
    A(f"s_lshr_b32 s{sR}, s{sR2}, 1")
    A(f"s_and_b32 s27, s{sR2}, 1")
else:
    A("s_lshl_b32 s26, s26, 2")
    A(f"s_add_u32 s{sR}, s26, s5")
    A("s_and_b32 s27, s24, 1")
A("s_mul_i32 s27, s27, 7")
A(f"s_add_u32 s{sC}, s27, s{sC2}")
EM(srd_consts(((GA, 1835008), (GB, 1605632))))
EM(da_db())

def g1_item(c):
    sl = 32768 * (c % 4); t = f"c{c}"
    o = []
    for g in range(4):
        d = ("vm", f"buffer_load_dwordx4 v{vDA+g}, {srd(GA)}, s{sA} offen offset:{1024*g} lds", t)
        if g == 0:
            fill = f"s_add_u32 s{sB}, s{sB}, {64*3584}" if c > 0 else "s_nop 0"
            o.append([f"s_add_u32 m0, s{sOA}, {sl}", fill, d])
        else: o.append(d)
    for g in range(4):
        d = ("vm", f"buffer_load_dwordx4 v{vDB+g}, {srd(GB)}, s{sB} offen offset:{1024*g} lds", t)
        if g == 0: o.append([f"s_add_u32 m0, s{sOB}, {sl}", f"s_add_u32 s{sA}, s{sA}, 128", d])
        else: o.append(d)
    return o
W2SLOT = [3, 0, 1, 2, 0, 1, 2]
def w_item(j):
    sl = 32768 * W2SLOT[j]; t = f"w{j}"
    o = []
    for h_ in range(2):
        for g in range(4):
            sw = sWa if h_ == 0 else sWb
            d = ("vm", f"buffer_load_dwordx4 v{vDR+g}, {srd(SW2)}, s{sw} offen offset:{1024*g} lds", t)
            if g == 0 and h_ == 0:
                o.append([f"s_add_u32 m0, s{sW2M0}, {sl}", f"s_add_u32 s{sWb}, s{sWa}, {32*896}", d])
            elif g == 0:
                o.append([f"s_add_u32 m0, s{sW2M0}, {sl+4096}", f"s_add_u32 s{sWa}, s{sWa}, {64*896}", d,
                          f"s_cmp_eq_u32 s{sWa}, s{sWEND}", f"s_cselect_b32 s{sCNT}, {7*64*896}, 0", f"s_sub_u32 s{sWa}, s{sWa}, s{sCNT}"])
            else: o.append(d)
    return o

EM(g1_item(0))
stamp("c0iss")
EM([f"s_mov_b32 s{sMASK}, 0xffff0000", f"v_bfe_u32 v{vr}, v{vLANE}, 2, 2", f"v_and_b32 v{vq}, 3, v{vLANE}",
    f"s_lshl_b32 s25, s{sC2}, 7", f"v_lshl_add_u32 v{TMP+7}, v{vLANE}, 1, s25"])
EM([f"v_lshlrev_b32 v{TMP}, 1, v{vG}", f"v_lshrrev_b32 v{TMP+1}, 1, v{vq}", f"v_add_u32 v{TMP}, v{TMP}, v{TMP+1}",
    f"v_and_b32 v{TMP+1}, 2, v{vr}", f"v_lshlrev_b32 v{TMP+1}, 1, v{TMP+1}", f"v_xor_b32 v{TMP}, v{TMP}, v{TMP+1}",
    f"v_lshlrev_b32 v{TMP}, 4, v{TMP}", f"v_lshl_add_u32 v{TMP}, v{vr}, 7, v{TMP}", f"v_and_b32 v{TMP+1}, 1, v{vq}",
    f"v_lshl_add_u32 v{vPW}, v{TMP+1}, 3, v{TMP}", f"v_add_u32 v{TMP+11}, s{sSTG}, v{vPW}"])
A("s_waitcnt lgkmcnt(0)")
E(("vm", f"global_load_ushort v{vDv}, v{TMP+7}, s[{pD}:{pD+1}]", "sm"))
HR = T1 + 24
EM([f"s_lshl_b32 s26, s{sJ}, 2", f"s_add_u32 s26, s26, s{sWAVE}", "s_lshl_b32 s26, s26, 11",
    f"v_lshl_add_u32 v{TMP+7}, v{vLANE}, 4, s26",
    ("vm", f"global_load_dwordx4 {v(HR,4)}, v{TMP+7}, s[{SH}:{SH+1}]", "sm"),
    ("vm", f"global_load_dwordx4 {v(HR+4,4)}, v{TMP+7}, s[{SH}:{SH+1}] offset:1024", "sm")])
def zip_with(work, dmas):
    step = max(1, len(work) // (len(dmas) + 1))
    for i, s_ in enumerate(work):
        E(s_)
        if dmas and i % step == step - 1: E(dmas.pop(0))
    EM(dmas)
setup = [f"s_lshr_b32 s{sWR}, s{sWAVE}, 1", f"s_and_b32 s{sWC}, s{sWAVE}, 1"] + [f"v_mov_b32 v{vZ+i}, 0" for i in range(4)]
setup += [f"v_and_b32 v{TMP+1}, 31, v{vLANE}", f"v_lshrrev_b32 v{TMP+2}, 5, v{vLANE}", f"v_bfe_u32 v{TMP+3}, v{vLANE}, 1, 3",
        f"v_xor_b32 v{TMP+2}, v{TMP+2}, v{TMP+3}", f"v_lshlrev_b32 v{TMP+2}, 4, v{TMP+2}",
        f"v_lshl_add_u32 v{TMP+1}, v{TMP+1}, 7, v{TMP+2}", f"s_lshl_b32 s26, s{sWR}, 13", f"v_add_u32 v{vRX}, s26, v{TMP+1}"]
setup += [f"v_xor_b32 v{vRX+s}, {32*s}, v{vRX}" for s in range(1, 4)]
setup += [f"s_lshl_b32 s26, s{sWC}, 1", f"v_xor_b32 v{TMP+1}, s26, v{vr}", f"v_lshlrev_b32 v{TMP+1}, 6, v{TMP+1}",
        f"v_lshl_add_u32 v{TMP+1}, v{vr}, 8, v{TMP+1}", f"v_lshrrev_b32 v{TMP+2}, 1, v{vG}",
        f"v_lshl_add_u32 v{TMP+1}, v{TMP+2}, 11, v{TMP+1}", f"v_and_b32 v{TMP+2}, 1, v{vG}",
        f"v_lshl_add_u32 v{TMP+1}, v{TMP+2}, 5, v{TMP+1}", f"v_lshl_add_u32 v{TMP+1}, v{vq}, 3, v{TMP+1}",
        f"v_add_u32 v{vRW}, 16384, v{TMP+1}", f"v_xor_b32 v{vRW+1}, 64, v{vRW}"]
setup += [f"v_mfma_f32_32x32x16_bf16 {v(ACC+16*i,16)}, {v(vZ,4)}, {v(vZ,4)}, 0" for i in range(4)]
setup += [f"v_bfe_u32 v{T1}, v{vLANE}, 1, 2", f"v_mul_u32_u24 v{T1}, 5120, v{T1}", f"v_lshrrev_b32 v{T1+1}, 3, v{vLANE}",
        f"v_lshl_add_u32 v{T1}, v{T1+1}, 5, v{T1}", f"v_and_b32 v{T1+2}, 1, v{vLANE}", f"v_lshl_add_u32 v{T1}, v{T1+2}, 4, v{T1}",
        f"s_lshl_b32 s26, s{sWAVE}, 9", f"s_add_u32 s26, s26, {STG}", f"v_add_u32 v{T1}, s26, v{T1}"]
zip_with(setup, g1_item(1))

C("KV phase")
VM.wait("kv")
stamp("kvarr")
vKVR = TMP + 11
P, VV = TMP + 12, TMP + 22
for a_ in range(1, 6):
    E(("lg", f"ds_read_b64_tr_b16 {v(P+2*(a_-1),2)}, v{vKVR} offset:{512*a_}", "k"))
for a_ in range(4):
    E(("lg", f"ds_read_b64_tr_b16 {v(VV+2*a_,2)}, v{vKVR} offset:{3072+512*a_}", "v"))
kvc = []
K = kvc.append
S0, S1 = TMP + 8, TMP + 9
Wa, Wb, Wc, Wd, We = TMP, TMP + 1, TMP + 2, TMP + 3, TMP + 6
K(f"v_alignbit_b32 v{Wa}, v{S0}, v{S0}, 16")
K(f"v_alignbit_b32 v{Wb}, v{S1}, v{S1}, 16")
K(f"v_and_b32 v{Wc}, 0xffff, v{S0}")
K(f"v_and_b32 v{We}, s{sMASK}, v{S1}")
K(f"v_bfi_b32 v{Wd}, s{sMASK}, v{S0}, v{S1}")
KS = TMP + 30
K(("wlg", "k"))
for tau in range(16):
    K(f"v_dot2_f32_bf16 v{KS+tau}, v{P+tau//2+2}, v{Wa if tau & 1 else Wc}, 0")
for tau in range(16):
    K(f"v_dot2c_f32_bf16 v{KS+tau}, v{P+tau//2+1}, v{Wb if tau & 1 else Wd}")
for tau in range(0, 16, 2):
    K(f"v_dot2c_f32_bf16 v{KS+tau}, v{P+tau//2}, v{We}")
K(("wlg", "v"))
UV = TMP + 46
for i in range(8):
    K(f"v_lshlrev_b32 v{UV+2*i}, 16, v{VV+i}")
    K(f"v_and_b32 v{UV+2*i+1}, s{sMASK}, v{VV+i}")
for i in range(8):
    K(f"v_pk_mul_f32 {v(KS+2*i,2)}, {v(KS+2*i,2)}, {v(UV+2*i,2)}")
OUTR = TMP + 12
assert OUTR % 4 == 0
for p in range(4):
    for h in range(2):
        K(f"v_cvt_pk_bf16_f32 v{OUTR+2*p+h}, v{KS+8*h+p}, v{KS+8*h+4+p}")
K(f"v_lshl_add_u32 v{TMP}, v{vLANE}, 5, s{sSTG}")
K(("lg", f"ds_write_b128 v{TMP}, {v(OUTR,4)}", "kw"))
K(("lg", f"ds_write_b128 v{TMP}, {v(OUTR+4,4)} offset:16", "kw"))
zip_with(kvc, g1_item(2))
VM.wait("c0")
LG.waitall()
A("s_barrier")
stamp("g1start")

C("GEMM1")
def g1_reads(n):
    c, s = n // 4, n % 4
    F = FA if n % 2 == 0 else FB
    hi = (c % 4) >> 1; o = 32768 * (c & 1)
    rx = (vRXh if hi else vRX) + s; rw = vRWh if hi else vRW
    return [("lg", f"ds_read_b128 {v(F,4)}, v{rx} offset:{o}", f"x0_{n}"),
            ("lg", f"ds_read_b64_tr_b16 {v(F+8,2)}, v{rw} offset:{o+4096*s}", f"w0_{n}"),
            ("lg", f"ds_read_b64_tr_b16 {v(F+10,2)}, v{rw} offset:{o+4096*s+1024}", f"w0_{n}"),
            ("lg", f"ds_read_b128 {v(F+4,4)}, v{rx} offset:{o+4096}", f"x1_{n}"),
            ("lg", f"ds_read_b64_tr_b16 {v(F+12,2)}, v{rw+1} offset:{o+4096*s}", f"w1_{n}"),
            ("lg", f"ds_read_b64_tr_b16 {v(F+14,2)}, v{rw+1} offset:{o+4096*s+1024}", f"w1_{n}")]
def g1_mf(F):
    return [f"v_mfma_f32_32x32x16_bf16 {v(ACC+16*(2*jf+tt),16)}, {v(F+8+4*jf,4)}, {v(F+4*tt,4)}, {v(ACC+16*(2*jf+tt),16)}"
            for jf, tt in ((0, 0), (0, 1), (1, 0), (1, 1))]
KO = T1 + 4
assert KO % 4 == 0
EM(g1_reads(0))
E(("lg", f"ds_read_b128 {v(KO,4)}, v{T1}", "ko"))
E(("lg", f"ds_read_b128 {v(KO+4,4)}, v{T1} offset:256", "ko"))
side = Side()
side.add(srd_consts(((SWS, WS_SIZE),)) + [
          f"v_and_b32 v{T1+2}, 7, v{vLANE}", f"v_lshlrev_b32 v{T1+2}, 4, v{T1+2}", f"v_lshl_add_u32 v{T1+2}, v{T1+1}, 12, v{T1+2}",
          f"s_lshl_b32 s26, s{sC2}, 2", f"s_add_u32 s26, s26, s{sWAVE}", "s_lshl_b32 s26, s26, 16", f"s_lshl_b32 s27, s{sR2}, 7",
          "s_add_u32 s26, s26, s27", f"s_add_u32 s26, s26, {WS_KVT}", "s_add_u32 s27, s26, 32768", ("wlg", "ko"),
          ("vm", f"buffer_store_dwordx4 {v(KO,4)}, v{T1+2}, {srd(SWS)}, s26 offen sc1", "kvst"),
          ("vm", f"buffer_store_dwordx4 {v(KO+4,4)}, v{T1+2}, {srd(SWS)}, s27 offen sc1", "kvst")] +
         srd_consts(((SDBG, 256),)) + [f"v_mov_b32 v{vZ1}, 0",
          ("vm", f"buffer_load_dword v{vTOK}, v{vZ1}, {srd(SDBG)}, 0 offen sc1", "tok"), ("mark", "s0")])
side.add([f"v_add_u32 v{vRXh+s}, 65536, v{vRX+s}" for s in range(4)] + [f"v_add_u32 v{vRWh+i}, 65536, v{vRW+i}" for i in range(2)])
side.add([("mark", "hi"), f"s_mov_b32 s{sSPIN}, 200000", f"s_lshl_b32 s5, s{sC2}, 7", f"s_lshl_b32 s{sKFA}, s{sR2}, 2",
          f"s_add_u32 s{sKFA}, s{sKFA}, s5", [f"s_cmp_eq_u32 s{sWAVE}, 0", f"s_cselect_b32 s{sKFA}, s{sKFA}, 0x7fff0000"], ("mark", "fa")])
side.add(srd_consts(((SOUT, 1835008), (SW2, 1605632))) + [f"v_lshlrev_b32 v{vL16}, 4, v{vLANE}",
          f"s_lshl_b32 s{sCHO}, s{sJ}, 1", f"s_add_u32 s{sCHO}, s{sCHO}, s{sWR}", f"s_lshl_b32 s{sCHO}, s{sCHO}, 12",
          f"s_mov_b32 s{sLO32}, -1", f"s_mov_b32 s{sLO32+1}, 0",
          f"v_add_u32 v{vDR+2}, 12288, v{vDR}", f"v_add_u32 v{vDR+3}, 18432, v{vDR}", f"s_lshl_b32 s{sW2M0}, s{sWAVE}, 13",
          f"s_and_b32 s26, s{sR2}, 3", "s_lshl_b32 s26, s26, 1", f"s_add_u32 s{sRHO}, s26, s{sC2}", f"s_sub_u32 s26, s{sRHO}, 7",
          [f"s_cmp_ge_u32 s{sRHO}, 7", f"s_cselect_b32 s{sRHO}, s26, s{sRHO}"]] + ([] if ROT else [f"s_mov_b32 s{sRHO}, 0"]) + [
          f"s_mul_i32 s{sWa}, s{sWAVE}, 401408", f"s_lshl_b32 s26, s{sC2}, 7", f"s_add_u32 s{sWa}, s{sWa}, s26",
          f"s_add_u32 s{sWEND}, s{sWa}, 401408", f"s_mul_i32 s26, s{sRHO}, {64*896}", f"s_add_u32 s{sWa}, s{sWa}, s26",
          ("mark", "consts")])
side.add([("wvm", "sm"), f"v_lshlrev_b32 v{vDv}, 16, v{vDv}", f"s_lshl_b32 s26, s{sWAVE}, 11", f"s_add_u32 s26, s26, {KVD}",
          f"v_lshl_add_u32 v{TMP}, v{vLANE}, 5, s26"])
side.add([f"v_mul_f32 v{KS+i}, v{KS+i}, v{vDv}" for i in range(16)])
side.add([f"v_cvt_pk_bf16_f32 v{OUTR+8+i}, v{KS+2*i}, v{KS+2*i+1}" for i in range(8)])
side.add([("lg", f"ds_write_b128 v{TMP}, {v(OUTR+8,4)}", "kd"), ("lg", f"ds_write_b128 v{TMP}, {v(OUTR+12,4)} offset:16", "kd"),
          ("mark", "kvd")])
T = T1 + 12
addr_work = [
    f"v_and_b32 v{vGO}, 31, v{vLANE}", f"v_lshlrev_b32 v{vKFo}, 2, v{vGO}", f"v_lshlrev_b32 v{vGO}, 4, v{vGO}",
    f"s_lshl_b32 s24, s{sR}, 1", f"s_add_u32 s24, s24, s{sWR}",
    f"s_lshl_b32 s25, s{sC}, 1", f"s_add_u32 s25, s25, s{sWC}",
    f"s_lshl_b32 s{sG0}, s24, 10", f"s_add_u32 s{sG0}, s{sG0}, {WS_STAT}",
    f"s_lshl_b32 s{sG1}, s25, 10", f"s_add_u32 s{sG1}, s{sG1}, {WS_CS}",
    f"s_lshl_b32 s{sG2}, s{sR2}, 1", f"s_add_u32 s{sG2}, s{sG2}, s{sWC}", f"s_lshl_b32 s{sG2}, s{sG2}, 9",
    f"s_add_u32 s{sG2}, s{sG2}, {WS_STAT}",
    f"s_lshr_b32 s{sKFA}, s{sJ}, 5", f"s_lshl_b32 s{sKFA}, s{sKFA}, 7",
    ("mark", "ga"),
    f"s_mul_i32 s26, s{sWAVE}, 28",
    f"s_lshl_b32 s{sHFA}, s{sR2}, 7", f"s_add_u32 s{sHFA}, s{sHFA}, s26", f"s_add_u32 s{sHFA}, s{sHFA}, {WS_HF}",
    f"s_mul_i32 s{sHOFF0}, s24, 229376", "s_lshl_b32 s26, s25, 12", f"s_add_u32 s{sHOFF0}, s{sHOFF0}, s26",
    f"s_add_u32 s{sHOFF0}, s{sHOFF0}, {WS_H}", f"s_add_u32 s{sHOFF1}, s{sHOFF0}, 114688",
    f"s_lshl_b32 s{sHFL}, s24, 7", "s_lshl_b32 s26, s25, 2", f"s_add_u32 s{sHFL}, s{sHFL}, s26", f"s_add_u32 s{sHFL}, s{sHFL}, {WS_HF}",
    f"v_lshrrev_b32 v{T}, 1, v{vG}", f"v_xor_b32 v{T+1}, s{sWR}, v{T}", f"v_lshlrev_b32 v{T+1}, 6, v{T+1}",
    f"v_xor_b32 v{vPW}, v{vPW}, v{T+1}", f"v_lshl_add_u32 v{vPW}, v{T}, 9, v{vPW}", f"v_add_u32 v{vPW}, s{sW2M0}, v{vPW}",
    f"v_xor_b32 v{vPW+1}, 64, v{vPW}", f"v_add_u32 v{vPW+2}, 65536, v{vPW}", f"v_add_u32 v{vPW+3}, 65536, v{vPW+1}",
    f"v_lshl_add_u32 v{T}, v{vG}, 1, v{vr}", f"v_lshlrev_b32 v{T}, 5, v{T}", f"v_lshl_add_u32 v{T}, v{vq}, 3, v{T}",
    f"s_mul_i32 s24, s{sWR}, 4224", f"s_add_u32 s24, s24, {KVL+128-96}", f"v_add_u32 v{vCA0}, s24, v{T}",
    f"v_add_u32 v{vCA1}, 2048, v{vCA0}",
    f"v_sub_u32 v{T}, v{vq}, v{vr}", f"v_lshlrev_b32 v{T}, 3, v{T}", f"v_lshlrev_b32 v{T+1}, 6, v{vG}", f"v_sub_u32 v{T}, v{T}, v{T+1}",
    f"s_mul_i32 s24, s{sWR}, 4352", f"s_lshl_b32 s25, s{sWC}, 7", "s_add_u32 s24, s24, s25", f"s_add_u32 s24, s24, {HL+256+96-32}",
    f"v_add_u32 v{vCB}, s24, v{T}",
    f"s_lshl_b32 s24, s{sWR}, 13", f"s_lshl_b32 s25, s{sWC}, 8", "s_add_u32 s25, s25, s24", f"s_add_u32 s25, s25, {YL0}",
    f"v_lshl_add_u32 v{vYW}, v{vLANE}, 2, s25",
    f"v_and_b32 v{T}, 1, v{vG}", f"v_lshlrev_b32 v{T}, 1, v{T}", f"v_lshrrev_b32 v{T+1}, 1, v{vG}", f"v_add_u32 v{T}, v{T}, v{T+1}",
    f"v_lshl_add_u32 v{T}, v{vr}, 2, v{T}", f"s_mul_i32 s26, s{sWR}, 544", f"s_lshl_b32 s25, s{sWC}, 4", "s_add_u32 s25, s25, s26",
    f"s_add_u32 s25, s25, {CARRY+16}", f"v_lshl_add_u32 v{vCW}, v{T}, 5, s25"]
CT = 4; vHFo, vHF = 7, 8
sYST = sDA
late_addr = [f"s_lshl_b32 s24, s{sWR}, 13", f"s_lshl_b32 s25, s{sWC}, 12", "s_add_u32 s25, s25, s24", f"s_add_u32 s25, s25, {YL0}",
         f"v_lshl_add_u32 v{CT}, v{vLANE}, 5, s25", f"v_lshrrev_b32 v{CT+2}, 3, v{vLANE}", f"s_lshl_b32 s25, s{sWC}, 4",
         f"v_add_u32 v{CT+2}, s25, v{CT+2}", f"v_lshlrev_b32 v{CT+2}, 4, v{CT+2}", f"v_add_u32 v{CT+1}, 128, v{CT+2}",
         f"v_and_b32 v{T}, 7, v{vLANE}",
         [f"v_cmp_eq_u32 vcc, 0, v{T}", f"s_mul_i32 s26, s{sWR}, 544", f"s_add_u32 s26, s26, {CARRY}",
          f"v_cndmask_b32 v{CT+2}, 0, v{CT+2}, vcc", f"v_cndmask_b32 v{CT+1}, 0, v{CT+1}, vcc"],
         f"v_add_u32 v{CT+2}, s26, v{CT+2}", f"v_add_u32 v{CT+1}, s26, v{CT+1}",
         f"s_lshl_b32 s{sYST}, s{sWC}, 11", f"s_add_u32 s{sYST}, s{sYST}, s{sCHO}", f"s_add_u32 s{sYST}, s{sYST}, {WS_YT}",
         f"v_min_u32 v{vHFo}, 6, v{vLANE}", f"v_lshlrev_b32 v{vHFo}, 2, v{vHFo}",
         f"s_lshl_b32 s24, s{sR2}, 1", f"s_add_u32 s24, s24, s{sWC}", "s_xor_b32 s25, s24, 1", "s_mul_i32 s24, s24, 114688",
         "s_mul_i32 s25, s25, 114688", f"s_mul_i32 s26, s{sWAVE}, 28672", f"s_add_u32 s26, s26, {WS_H}",
         f"s_add_u32 s{sOA}, s24, s26", f"s_add_u32 s{sOB}, s25, s26", f"s_lshl_b32 s26, s{sRHO}, 12",
         f"s_add_u32 s{sA}, s{sOA}, s26", f"s_add_u32 s{sB}, s{sOB}, s26"]
kvflag = get_token_fast("m") + [("vm", f"buffer_store_dword v{vTOK}, v{vZ1}, {srd(SWS)}, s{sKFA} offen sc1", "kfl")]
h_store = [f"s_mul_i32 s5, s{sWR}, 4352", f"s_lshl_b32 s27, s{sWC}, 11", "s_add_u32 s5, s5, s27", f"s_add_u32 s5, s5, {HL+256}",
           f"v_add_u32 v{T+2}, s5, v{vL16}",
           ("lg", f"ds_write_b128 v{T+2}, {v(HR,4)}", "hw"), ("lg", f"ds_write_b128 v{T+2}, {v(HR+4,4)} offset:1024", "hw")]
pads = [f"s_mul_i32 s5, s{sWR}, 4352", f"s_mul_i32 s27, s{sWR}, 4224", f"s_add_u32 s5, s5, {HL}", f"s_add_u32 s27, s27, {KVL}",
        [f"s_cmp_eq_u32 s{sWC}, 0", "s_cselect_b32 s5, s5, s27"],
        f"v_lshl_add_u32 v{T+2}, v{vLANE}, 2, s5",
        f"s_mul_i32 s5, s{sWR}, 544", f"s_add_u32 s5, s5, {CARRY}", f"v_lshl_add_u32 v{T+3}, v{vq}, 2, s5",
        f"s_lshl_b32 s5, s{sWC}, 5", f"v_and_b32 v{T+4}, s5, v{vLANE}",
        [f"v_cmp_ne_u32 vcc, 0, v{T+4}", "s_nop 1", f"v_cndmask_b32 v{T+2}, v{T+2}, v{T+3}, vcc"],
        ("lg", f"ds_write_b32 v{T+2}, v{vZ1}", "pad")]
gl = [f"buffer_load_dwordx4 {v(GR,4)}, v{vGO}, {srd(SWS)}, s{sG0} offen sc1",
      f"buffer_load_dwordx4 {v(GR+4,4)}, v{vGO}, {srd(SWS)}, s{sG0} offen offset:512 sc1",
      f"buffer_load_dwordx4 {v(GR+8,4)}, v{vGO}, {srd(SWS)}, s{sG1} offen sc1",
      f"buffer_load_dwordx4 {v(GR+12,4)}, v{vGO}, {srd(SWS)}, s{sG1} offen offset:512 sc1",
      f"buffer_load_dwordx4 {v(GR+16,4)}, v{vGO}, {srd(SWS)}, s{sG2} offen sc1"]
kfl = f"buffer_load_dword v{vKF}, v{vKFo}, {srd(SWS)}, s{sKFA} offen sc1"
kv_go = [("wvm", "kf")] + check_flag("kv", vKF, [kfl]) + [
          f"s_mul_i32 s28, s{sWR}, 4224", f"s_lshl_b32 s29, s{sWC}, 11", "s_add_u32 s28, s28, s29", f"s_add_u32 m0, s28, {KVL+128}",
          f"s_add_u32 s29, s29, s{sCHO}", f"s_add_u32 s29, s29, {WS_KVT}",
          ("vm", f"buffer_load_dwordx4 v{vL16}, {srd(SWS)}, s29 offen sc1 lds", "kvl"),
          ("vm", f"buffer_load_dwordx4 v{vL16}, {srd(SWS)}, s29 offen offset:1024 sc1 lds", "kvl")]
KFPOLL = int(opts.get("kfpoll", "19"))
KFCHK = int(opts.get("kfchk", "25"))
GRLD = int(opts.get("grld", "20"))
hooks = {KFCHK: [kv_go]}
assert KFCHK % 2 == 1
for n in range(28):
    c, s = n // 4, n % 4
    F = FA if n % 2 == 0 else FB
    M = g1_mf(F)
    if s == 0: item = g1_item(c + 3) if c + 3 < 7 else w_item(c + 3 - 7)
    D = item[2 * s: 2 * s + 2]
    R = g1_reads(n + 1) if n < 27 else []
    if n == 3: side.until("s0")
    if n == 7: side.until("hi"); side.until("fa")
    if n == 8: side.q.insert(0, kvflag); side.add(addr_work); side.add(pads); side.add(h_store)
    if n == 15: side.until("consts")
    if n == 16: side.add(late_addr)
    if n == GRLD: side.until("kvd"); side.until("ga"); side.q[0:0] = [[("vm", kfl, "kf")] + [("vm", x, "gr") for x in gl]]
    cap = G1CAP
    if s < 3:
        LG.wait(f"w0_{n}"); A(M[0]); EM(R[0:2]); side.fill(cap)
        LG.wait(f"x1_{n}"); A(M[1]); E(R[2]); E(D[0]); side.fill(cap)
        LG.wait(f"w1_{n}"); A(M[2]); EM(R[3:5]); side.fill(cap)
        A(M[3]); E(R[5]); E(D[1]); side.fill(cap)
    else:
        LG.wait(f"w0_{n}"); A(M[0]); E(D[0]); side.fill(cap + 1)
        LG.wait(f"x1_{n}"); A(M[1])
        if n < 27:
            if TS == 2: stamp(f"b{c}")
            if c == 1: VM.wait("tok")
            VM.wait(f"c{c+1}")
            LG.waitall()
            A("s_barrier")
            EM(R[0:3])
        else:
            LG.wait(f"w1_{n}")
        A(M[2]); EM(R[3:6])
        A(M[3]); E(D[1]); side.fill(cap + 1)
    for g_ in hooks.get(n, []): E(g_)
side.flush()
stamp("g1done")

C("aug")
def pump(j):
    sl = W2SLOT[j]
    o = [("wvm", f"w{j}")]
    for s in range(4):
        for jd in range(2):
            for e in range(2):
                o.append(("lg", f"ds_read_b64_tr_b16 {a(32*j+8*s+4*jd+2*e,2)}, v{vPW+jd+2*(sl>>1)} offset:{32768*(sl&1)+2048*s+1024*e}", f"p{j}"))
    return o
VM.wait("gr")
extra = []
for k_ in range(1, 5):
    extra += [f"v_cmp_ne_u32 s[{sTMP64}:{sTMP64+1}], s{sTOK}, v{GR+4*k_+3}", f"s_or_b64 vcc, vcc, s[{sTMP64}:{sTMP64+1}]"]
EM(check_flag("gr", GR + 3, gl, extra))
GX, GW = GR, GR + 8
for r_ in (GX, GX + 1, GX + 4, GX + 5):
    A(f"v_cndmask_b32 v{r_}, 0, v{r_}, s[{sLO32}:{sLO32+1}]")
for r_ in (GX + 3, GX + 7, GW + 3, GW + 7):
    A(f"v_mov_b32 v{r_}, 0")
A(f"v_mov_b32 v{vST}, v{GR+16}")
A(f"v_mov_b32 v{vST+1}, v{GR+17}")
for jf, tt in ((0, 0), (0, 1), (1, 0), (1, 1)):
    A(f"v_mfma_f32_32x32x16_bf16 {v(ACC+16*(2*jf+tt),16)}, {v(GW+4*jf,4)}, {v(GX+4*tt,4)}, {v(ACC+16*(2*jf+tt),16)}")
EM(pump(0))
stamp("aug")
C("H epilogue")
for n, (jf, tt) in enumerate(((0, 0), (0, 1), (1, 0), (1, 1))):
    b = ACC + 16 * (2 * jf + tt)
    EM([f"v_max_f32 v{b+i}, 0, v{b+i}" for i in range(16)])
    EM([f"v_pk_mul_f32 {v(b+2*i,2)}, {v(b+2*i,2)}, {v(b+2*i,2)}" for i in range(8)])
    EM([f"v_cvt_pk_bf16_f32 v{b+i}, v{b+2*i}, v{b+2*i+1}" for i in range(8)])
    so = sHOFF0 if tt == 0 else sHOFF1
    EM([("vm", f"buffer_store_dwordx4 {v(b,4)}, v{vL16}, {srd(SWS)}, s{so} offen offset:{2048*jf} {HSC}", "hst"),
        ("vm", f"buffer_store_dwordx4 {v(b+4,4)}, v{vL16}, {srd(SWS)}, s{so} offen offset:{2048*jf+1024} {HSC}", "hst")])
stamp("hstiss")
VM.wait("kvl")
LG.waitall()
A("s_barrier")
stamp("convstart")

C("conv")
ACC2 = 112
HBUF = [a(224 + 4 * i, 4) for i in range(8)] + [v(48 + 4 * i, 4) for i in range(16)]
assert NB <= len(HBUF)
def h_load(n):
    ks, jt = n // 2, n % 2
    so = sA if jt == 0 else sB
    o = []
    if ks % 4 == 0 and ks > 0 and jt == 0:
        o += [f"s_add_u32 s{sRHO}, s{sRHO}, 1", f"s_add_u32 s{sA}, s{sA}, 4096", f"s_add_u32 s{sB}, s{sB}, 4096",
              f"s_cmp_eq_u32 s{sRHO}, 7", f"s_cselect_b32 s{sA}, s{sOA}, s{sA}", f"s_cselect_b32 s{sB}, s{sOB}, s{sB}"]
    o.append(("vm", f"buffer_load_dwordx4 {HBUF[n % NB]}, v{vL16}, {srd(SWS)}, s{so} offen offset:{1024*(ks%4)} sc1", f"h{n}"))
    return o
hfl = f"buffer_load_dword v{vHF}, v{vHFo}, {srd(SWS)}, s{sHFA} offen sc1"
side = Side()
hflag = [[("wvm", "hst"), ("vm", f"buffer_store_dword v{vTOK}, v{vZ1}, {srd(SWS)}, s{sHFL} offen {HSC}", "hf"), ("stamp", "hflag")]]
def mix(x, y):
    o = []
    while x or y:
        if x: o.append(x.pop(0))
        if x: o.append(x.pop(0))
        if y: o.append(y.pop(0))
    return o
side.add(mix(pump(1), w_item(3)))
side.add(hflag)
side.add([("wlg", "p1")]); side.add(mix(pump(2), w_item(4)))
side.add([("wlg", "p2")]); side.add(w_item(5))
side.add(pump(3))
side.add([("vm", hfl, "hfl")])
side.add([("wlg", "p3")]); side.add(w_item(6))
side.add(pump(4))
side.add([[("wvm", "hfl")] + check_flag("hf", vHF, [hfl]) + [("stamp", "hfok")]])
EARLY = int(opts.get("early", str(NB)))
side.add([h_load(n) for n in range(EARLY)])
def cb_read(w2):
    b = CBF + 4 * (w2 % 3)
    E(("lg", f"ds_read_b64_tr_b16 {v(b,2)}, v{vCB} offset:{256*w2+32}", f"b{w2}"))
    E(("lg", f"ds_read_b64_tr_b16 {v(b+2,2)}, v{vCB} offset:{256*w2}", f"b{w2}"))
cb_read(0)
for sg in range(16):
    base = vCA0 if sg < 8 else vCA1
    o = 32 * (sg % 8)
    E(("lg", f"ds_read2_b64 {v(CA+4*sg,4)}, v{base} offset0:{o} offset1:{o+4}", f"a{sg}"))
    if sg == 3: cb_read(1)
for w2 in range(16):
    LG.wait(f"b{w2}")
    b = CBF + 4 * (w2 % 3)
    for sg in range(16 - w2):
        if w2 == 0: LG.wait(f"a{sg}")
        d = CACC + 4 * (sg + w2)
        src = "0" if w2 == 0 else v(d, 4)
        A(f"v_mfma_f32_16x16x32_bf16 {v(d,4)}, {v(CA+4*sg,4)}, {v(b,4)}, {src}")
        if w2 == 0 and sg == 15: cb_read(2)
        elif w2 > 0 and sg == 0 and w2 + 2 < 16: cb_read(w2 + 2)
        else: side.fill(1)
stamp("convmfma")
A("s_nop 7")
DPP = "wave_shr:1 row_mask:0xf bank_mask:0xf bound_ctrl:0"
for lvl in (2, 1, 0):
    for t2 in range(16):
        d = CACC + 4 * t2
        A(f"v_add_f32_dpp v{d+lvl}, v{d+lvl+1}, v{d+lvl} {DPP}")
        if t2 % 4 == 3: side.fill(1)
if TS >= 2: stamp("horner")
X = lambda t2, lv: CACC + 4 * t2 + lv
perm = []
for k_ in range(8):
    for lv in (1, 2, 3): perm.append(f"v_permlane32_swap_b32 v{X(2*k_,lv)}, v{X(2*k_+1,lv)}")
for m_ in range(4):
    for lv in (1, 2, 3): perm.append(f"v_permlane16_swap_b32 v{X(4*m_+1,lv)}, v{X(4*m_+3,lv)}")
for m_ in range(3):
    for lv in (1, 2, 3):
        perm.append(f"v_mov_b32_dpp v{X(15,lv)}, v{X(4*m_+3,lv)} row_shl:{12-4*m_} row_mask:0xf bank_mask:{1<<m_:#x}")
for t2 in range(16):
    E(("lg", f"ds_write_b32 v{vYW}, v{CACC+4*t2} offset:{512*t2}", "yw"))
    for _ in range(3):
        if perm: A(perm.pop(0))
    side.fill(1)
EM(["s_mov_b32 exec_lo, 0x88888888", "s_mov_b32 exec_hi, 0x88888888",
    ("lg", f"ds_write_b128 v{vCW}, {v(CACC+60,4)}", "yw"), "s_mov_b64 exec, -1"])
if TS >= 2: stamp("perm")
LG.waitall()
A("s_barrier")
if TS >= 2: stamp("B4")
Y = 176; CY = 192; YP = 200
for i in range(2):
    EM([("lg", f"ds_read_b128 {v(Y+8*i,4)}, v{CT} offset:{2048*i}", f"y{i}"),
        ("lg", f"ds_read_b128 {v(Y+8*i+4,4)}, v{CT} offset:{2048*i+16}", f"y{i}"),
        ("lg", f"ds_read_b128 {v(CY+4*i,4)}, v{CT+2-i}", f"y{i}")])
for i in range(2):
    LG.wait(f"y{i}")
    for c_ in range(3): A(f"v_add_f32 v{Y+8*i+c_}, v{Y+8*i+c_}, v{CY+4*i+1+c_}")
    for c_ in range(4): A(f"v_cvt_pk_bf16_f32 v{YP+4*i+c_}, v{Y+8*i+2*c_}, v{Y+8*i+2*c_+1}")
    E(("vm", f"buffer_store_dwordx4 {v(YP+4*i,4)}, v{vL16}, {srd(SWS)}, s{sYST} offen offset:{1024*i} sc1", "yst"))
stamp("ystiss")

C("GEMM2")
side.flush()
side = Side()
EE = 20
vXO, vYFo, vYF, vYD, vYR, vXD = 4, 5, 6, 9, 10, 11
XV, B2V, KDV, YV = 240, 208, 216, 248
XF, BF, SF, KF = 176, 192, 208, 224
RT = 240
vNM, vRS, vRS2, vRL = 24, 25, 26, 27
prep = [f"v_and_b32 v{EE}, 31, v{vLANE}", f"v_lshrrev_b32 v{EE+1}, 5, v{vLANE}",
         f"s_lshl_b32 s{sG0}, s{sR2}, 1", f"s_add_u32 s{sG0}, s{sG0}, s{sWC}", f"s_mul_i32 s{sXO}, s{sG0}, 28672",
         f"s_lshl_b32 s{sG1}, s{sC2}, 1", f"s_add_u32 s{sG1}, s{sG1}, s{sWR}", f"s_lshl_b32 s26, s{sG1}, 6",
         f"s_add_u32 s{sXO}, s{sXO}, s26", f"s_lshl_b32 s{sXS}, s{sWAVE}, 12", f"s_add_u32 s{sXS}, s{sXS}, {XS}",
         f"v_lshrrev_b32 v{EE+2}, 2, v{vLANE}", f"v_mul_u32_u24 v{vXD}, 896, v{EE+2}", f"v_lshl_add_u32 v{vXD}, v{vq}, 4, v{vXD}",
         f"v_lshl_add_u32 v{EE+3}, v{EE+1}, 3, s26",
         f"s_lshr_b32 s24, s{sCHO}, 10", f"s_mul_i32 s25, s{sWC}, 1792", "s_add_u32 s24, s24, s25", f"s_add_u32 s24, s24, {WS_YF}"]
prep += pump(5) + pump(6)
yflag = [[("wvm", "yst"), ("vm", f"buffer_store_dword v{vTOK}, v{vZ1}, {srd(SWS)}, s24 offen sc1", "yf"), ("stamp", "yflag")]]
prep += [[f"s_add_u32 m0, s{sXS}, 2048", f"s_add_u32 s5, s{sXO}, {16*896-1024}",
          ("vm", f"buffer_load_dwordx4 v{vXD}, {srd(SX)}, s{sXO} offen lds", "ex")],
         ("vm", f"buffer_load_dwordx4 v{vXD}, {srd(SX)}, s5 offen offset:1024 lds", "ex")]
prep += [("vm", f"global_load_dwordx2 {v(B2V+2*j,2)}, v{EE+3}, s[{pB2}:{pB2+1}] offset:{16*j}", "ex") for j in range(4)]
prep += [f"v_lshl_add_u32 v{EE+3}, v{EE+1}, 2, v{vr}", f"v_and_b32 v{vRL}, 1, v{vG}",
         f"v_lshlrev_b32 v{vYR}, 6, v{EE+3}", f"v_lshl_add_u32 v{vYR}, v{vRL}, 5, v{vYR}", f"v_lshl_add_u32 v{vYR}, v{vq}, 3, v{vYR}",
         f"v_add_u32 v{vYR}, s{sXS}, v{vYR}",
         f"v_lshlrev_b32 v{vRL}, 11, v{vRL}", f"v_lshl_add_u32 v{vRL}, v{EE+3}, 5, v{vRL}", f"v_lshl_add_u32 v{vRL}, v{vq}, 3, v{vRL}",
         f"s_lshl_b32 s26, s{sWC}, 12", f"s_lshl_b32 s5, s{sWR}, 10", "s_add_u32 s26, s26, s5", f"s_add_u32 s26, s26, {KVD}",
         f"v_add_u32 v{vRL}, s26, v{vRL}"]
prep += [("lg", f"ds_read_b64_tr_b16 {v(KDV+2*j,2)}, v{vRL} offset:{256*j}", "kd") for j in range(4)]
prep += [f"v_lshlrev_b32 v{EE+3}, 6, v{EE}", f"v_lshl_add_u32 v{EE+3}, v{EE+1}, 3, v{EE+3}", f"v_add_u32 v{EE+3}, s{sXS}, v{EE+3}",
         f"v_lshlrev_b32 v{vNM}, 16, v{vST}", f"v_and_b32 v{vRS}, s{sMASK}, v{vST+1}", f"v_rcp_f32 v{vRS}, v{vRS}",
         f"v_mul_u32_u24 v{vXO}, 896, v{EE}", f"v_lshl_add_u32 v{vXO}, v{EE+1}, 4, v{vXO}",
         f"v_mul_f32 v{vRS2}, v{vRS}, v{vRS}", f"v_mul_f32 v{vNM}, v{vNM}, v{vRS}",
         f"s_lshr_b32 s26, s{sR2}, 4", "s_mul_i32 s26, s26, 1792", f"s_lshl_b32 s5, s{sG1}, 7", f"s_add_u32 s{sYF}, s26, s5",
         f"s_add_u32 s{sYF}, s{sYF}, {WS_YF}", f"v_lshlrev_b32 v{vYFo}, 2, v{EE}",
         f"v_lshlrev_b32 v{vYD}, 12, v{EE+2}", f"v_lshl_add_u32 v{vYD}, v{vq}, 4, v{vYD}",
         f"s_lshl_b32 s{sYD}, s{sG1}, 17", f"s_lshl_b32 s26, s{sG0}, 6", f"s_add_u32 s{sYD}, s{sYD}, s26",
         f"s_add_u32 s{sYD}, s{sYD}, {WS_YT}", ("mark", "yready"), [("wlgall",), "s_barrier"]]
for i in range(8):
    prep += [f"v_lshlrev_b32 v{KF+2*i}, 16, v{KDV+i}", f"v_and_b32 v{KF+2*i+1}, s{sMASK}, v{KDV+i}"]
for j in range(1, 4):
    prep += [f"s_xor_b32 s25, s{sWAVE}, {j}", "s_mul_i32 s25, s25, 12288", f"s_add_u32 s25, s25, {4096*(j-1)}",
             f"v_add_u32 v{12+j}, s25, v{vL16}"]
prep += [f"s_mul_i32 s25, s{sWAVE}, 12288", f"v_add_u32 v12, s25, v{vL16}", f"v_mul_f32 v{vRL}, 0xbfb8aa3b, v{vRS2}"]
mid = [("wvm", "ex")]
mid += [("lg", f"ds_read_b64 {v(XV+2*j,2)}, v{EE+3} offset:{2048+16*j}", "xv") for j in range(4)]
for i in range(8):
    mid += [f"v_lshlrev_b32 v{BF+2*i}, 16, v{B2V+i}", f"v_and_b32 v{BF+2*i+1}, s{sMASK}, v{B2V+i}"]
mid += [("wlg", "xv")]
for i in range(8):
    mid += [f"v_lshlrev_b32 v{XF+2*i}, 16, v{XV+i}", f"v_and_b32 v{XF+2*i+1}, s{sMASK}, v{XV+i}"]
mid += [f"v_fma_f32 v{SF+i}, v{XF+i}, v{vRS}, v{vNM}" for i in range(16)]
late = []
for i in range(8):
    late += [f"v_lshlrev_b32 v{RT}, 16, v{YV+i}", f"v_and_b32 v{RT+1}, s{sMASK}, v{YV+i}",
             f"v_add_f32 v{KF+2*i}, v{KF+2*i}, v{RT}", f"v_add_f32 v{KF+2*i+1}, v{KF+2*i+1}, v{RT+1}"]
late += [f"v_mul_f32 v{SF+i}, v{SF+i}, v{KF+i}" for i in range(16)]
late += [f"v_mul_f32 v{KF+i}, 0xbfb8aa3b, v{BF+i}" for i in range(16)]
side.add(prep)
nxt = EARLY
N_YFL = int(opts.get("nyfl", "10"))
N_MID = int(opts.get("nmid", "30"))
N_YPOLL = int(opts.get("ypoll", "31"))
N_YCHK = int(opts.get("ychk", "41"))
N_YRD = int(opts.get("yrd", "52"))
yfl = f"buffer_load_dword v{vYF}, v{vYFo}, {srd(SWS)}, s{sYF} offen sc1"
G2CAP = int(opts.get("g2cap", "4"))
SK = int(opts.get("sk", "5"))
def mf2(ks, jt, jd):
    n = 2 * ks + jt
    d = ACC2 + 16 * (2 * jd + jt)
    src = "0" if ks == 0 else v(d, 16)
    A(f"v_mfma_f32_32x32x16_bf16 {v(d,16)}, {a(8*ks+4*jd,4)}, {HBUF[n % NB]}, {src}")
def events(n):
    if n == N_YPOLL:
        assert "yready" in marks
        E(("vm", yfl, "yfl"))
    if n == N_YCHK:
        VM.wait("yfl")
        EM(check_flag("yf", vYF, [yfl]))
        A(f"s_mov_b32 m0, s{sXS}")
        A(f"s_add_u32 s27, s{sYD}, {65536-1024}")
        E(("vm", f"buffer_load_dwordx4 v{vYD}, {srd(SWS)}, s{sYD} offen sc1 lds", "yd"))
        E(("vm", f"buffer_load_dwordx4 v{vYD}, {srd(SWS)}, s27 offen offset:1024 sc1 lds", "yd"))
for ks in range(28 - SK):
    if ks % 4 == 0 and ks >= 16: LG.wait(f"p{ks//4}")
    for jt in range(2):
        n = 2 * ks + jt
        if TS >= 2 and n % 6 == 0: stamp(f"n{n}")
        VM.wait(f"h{n}")
        if n == N_YFL: side.q[0:0] = yflag
        if n == N_MID: side.flush(); side.add(mid)
        for jd in range(2):
            mf2(ks, jt, jd)
            if jd == 0 and nxt < min(56, n + NB): E(h_load(nxt)); nxt += 1
            side.fill(G2CAP)
        events(n)
        if nxt < min(56, n + 1 + NB): E(h_load(nxt)); nxt += 1
assert nxt == 56 and N_YCHK < 2 * (28 - SK)
side.flush()
LG.wait("p6")
def red_w(j): return [("lg", f"ds_write_b128 v{12+j}, {v(ACC2+16*j+4*i,4)} offset:{1024*i}", "rw") for i in range(4)]
order = (3, 2, 1, 0)
for oi, j in enumerate(order):
    jd, jt = j >> 1, j & 1
    if oi == 1:
        VM.wait("yd")
        for jj in range(4):
            E(("lg", f"ds_read_b64_tr_b16 {v(YV+2*jj,2)}, v{vYR} offset:{512*jj}", "yv"))
    if oi == 2: side.add([("wlg", "yv")] + late)
    wr_ = red_w(order[oi - 1]) if oi >= 1 else []
    for k_, ks in enumerate(range(28 - SK, 28)):
        VM.wait(f"h{2*ks+jt}")
        mf2(ks, jt, jd)
        if oi >= 1 and k_ == 0: A("s_nop 10")
        if wr_ and k_ >= 0: E(wr_.pop(0))
        side.fill(3)
    EM(wr_)
stamp("g2done")
C("reduction")
side.flush()
LG.waitall()
A("s_barrier")
RD = 48
for j in range(3):
    for i in range(4):
        E(("lg", f"ds_read_b128 {v(RD+16*j+4*i,4)}, v12 offset:{4096*j+1024*i}", f"r{j}"))
for j in range(3):
    LG.wait(f"r{j}")
    for i in range(8):
        A(f"v_pk_add_f32 {v(ACC2+2*i,2)}, {v(ACC2+2*i,2)}, {v(RD+16*j+2*i,2)}")
stamp("reduced")
C("final epilogue")
O = ACC2
for i in range(16): A(f"v_fmac_f32 v{KF+i}, v{O+i}, v{vRL}")
for i in range(16): A(f"v_exp_f32 v{KF+i}, v{KF+i}")
for i in range(16): A(f"v_fmac_f32 v{BF+i}, v{O+i}, v{vRS2}")
for i in range(16): A(f"v_add_f32 v{KF+i}, 1.0, v{KF+i}")
for i in range(16): A(f"v_rcp_f32 v{KF+i}, v{KF+i}")
for i in range(16): A(f"v_mul_f32 v{SF+i}, v{SF+i}, v{BF+i}")
for i in range(16): A(f"v_fmac_f32 v{XF+i}, v{SF+i}, v{KF+i}")
for i in range(8): A(f"v_cvt_pk_bf16_f32 v{RT+i}, v{XF+2*i}, v{XF+2*i+1}")
A("s_nop 1")
for pr in range(2):
    A(f"v_permlane32_swap_b32 v{RT+4*pr}, v{RT+4*pr+2}")
    A(f"v_permlane32_swap_b32 v{RT+4*pr+1}, v{RT+4*pr+3}")
A("s_nop 1")
for pr in range(2):
    A(f"buffer_store_dwordx4 {v(RT+4*pr,4)}, v{vXO}, {srd(SOUT)}, s{sXO} offen offset:{32*pr}")
if TS:
    stamp("outiss")
    A("s_waitcnt vmcnt(0)")
    stamp("end")
    A("s_waitcnt lgkmcnt(0)")
    k = len(ts_names)
    for i in range(max(0, k - 3), k):
        A(f"v_writelane_b32 v{vTSR}, s{sTS0+2*(i%4)}, {i}")
    A(f"s_lshl_b32 s24, s{sJ}, 2")
    A(f"s_add_u32 s24, s24, s{sWAVE}")
    A("s_lshl_b32 s24, s24, 8")
    A(f"s_add_u32 s24, s24, {WS_TS}")
    A(f"v_lshlrev_b32 v10, 2, v{vLANE}")
    A(f"buffer_store_dword v{vTSR}, v10, {srd(SWS)}, s24 offen")
    L.insert(0, "; TSNAMES " + ",".join(ts_names))
LB("L_end")
A("s_endpgm")
for sp in slow: EM(sp)

LB("L_helper")
for reg, off in ((SDBG, 96), (SWS, 104), (pB1, 64)):
    A(f"s_load_dwordx2 s[{reg}:{reg+1}], s[0:1], {off}")
A(f"s_memrealtime s[{sTMP64}:{sTMP64+1}]")
A(f"s_getpc_b64 s[{sHOFF0}:{sHOFF0+1}]")
LB("L_pc")
A(f"s_sub_u32 s{sHOFF0}, s{sHOFF0}, L_pc-{KNAME}")
A(f"s_subb_u32 s{sHOFF1}, s{sHOFF1}, 0")
A(f"v_lshlrev_b32 v{T1}, 4, v0")
NPF = 6
for i in range(NPF):
    A(f"global_load_dwordx4 {v(T1+4,4)}, v{T1}, s[{sHOFF0}:{sHOFF0+1}]")
    if i < NPF - 1: A(f"v_add_u32 v{T1}, 4096, v{T1}")
if opts.get("hp", "1") == "1":
    A("s_add_u32 s24, s2, 2")
    A("s_and_b32 s24, s24, 7")
    A("s_lshl_b32 s25, s24, 1")
    A("s_lshr_b32 s26, s2, 3")
    A(f"s_add_u32 s{sR}, s25, s26")
    A("s_and_b32 s25, s24, 1")
    A("s_mul_i32 s25, s25, 7")
    A("s_sub_u32 s26, s2, 16")
    A("s_lshr_b32 s26, s26, 1")
    A(f"s_add_u32 s{sC}, s25, s26")
else:
    A(f"s_mov_b32 s{sR}, s2")
    A(f"s_sub_u32 s{sC}, s2, 16")
EM(srd_consts(((GA, 1835008), (GB, 1605632))))
EM(da_db())
EM(common_consts())
A(f"s_mov_b32 s{sONES}, 0x3f803f80")
A(f"s_movk_i32 s{sDA}, 128")
A(f"s_mov_b32 s{sSLOT}, 0")
A("s_waitcnt lgkmcnt(0)")
A(f"s_or_b32 s5, s2, s{sWAVE}")
A("s_cmp_lg_u32 s5, 0")
A("s_cbranch_scc1 L_notok")
A(f"s_or_b32 s5, s{sTMP64}, 1")
A(f"v_mov_b32 v{vTOK}, s5")
A(f"buffer_store_dword v{vTOK}, v{vZ1}, {srd(SDBG)}, 0 offen sc1")
LB("L_notok")
A("s_cmp_lt_u32 s2, 16")
A("s_cbranch_scc1 L_hs_sel")
A(f"s_mov_b64 s[{GA}:{GA+1}], s[{GB}:{GB+1}]")
A(f"s_mov_b32 s{GA+2}, 1605632")
for g in range(4): A(f"v_mov_b32 v{vDA+g}, v{vDB+g}")
A(f"s_mov_b32 s{sA}, s{sB}")
A(f"s_mov_b32 s{sDA}, {64*3584}")
LB("L_hs_sel")
A(f"s_mov_b32 s{sCNT}, 0")
LB("L_h_pre")
A(f"s_add_u32 m0, s{sSLOT}, s{sOA}")
A(f"s_add_u32 s{sSLOT}, s{sSLOT}, 16384")
for g in range(4):
    A(f"buffer_load_dwordx4 v{vDA+g}, {srd(GA)}, s{sA} offen offset:{1024*g} lds")
A(f"s_add_u32 s{sA}, s{sA}, s{sDA}")
A(f"s_add_u32 s{sCNT}, s{sCNT}, 1")
A(f"s_cmp_lt_u32 s{sCNT}, 7")
A("s_cbranch_scc1 L_h_pre")
A(f"buffer_load_dword v{vTOK}, v{vZ1}, {srd(SDBG)}, 0 offen sc1")
HA = 48
for i in range(8): A(f"v_mov_b32 v{HA+i}, 0")
A("s_cmp_lt_u32 s2, 16")
A("s_cbranch_scc0 L_hcs")
A(f"v_and_b32 v{TMP}, 31, v{vLANE}")
A(f"v_lshrrev_b32 v{TMP+1}, 5, v{vLANE}")
A(f"v_bfe_u32 v{TMP+2}, v{vLANE}, 1, 3")
A(f"v_xor_b32 v{TMP+1}, v{TMP+1}, v{TMP+2}")
A(f"v_lshlrev_b32 v{TMP+1}, 4, v{TMP+1}")
A(f"v_lshl_add_u32 v{TMP+1}, v{TMP}, 7, v{TMP+1}")
A(f"v_add_u32 v{vRX}, s{sOA}, v{TMP+1}")
for s in range(1, 4): A(f"v_xor_b32 v{vRX+s}, {32*s}, v{vRX}")
for c in range(7):
    A(f"s_waitcnt vmcnt({25-4*c})")
    if c == 4:
        for s in range(4): A(f"v_add_u32 v{vRX+s}, 65536, v{vRX+s}")
    for s in range(4): A(f"ds_read_b128 {v(FA+4*s,4)}, v{vRX+s} offset:{16384*(c%4)}")
    for s in range(4):
        A(f"s_waitcnt lgkmcnt({3-s})")
        for n in range(4):
            A(f"v_dot2c_f32_bf16 v{HA+(n&1)}, s{sONES}, v{FA+4*s+n}")
            A(f"v_dot2c_f32_bf16 v{HA+2+(n&1)}, v{FA+4*s+n}, v{FA+4*s+n}")
vSUM, vSQ = HA, HA + 2
HG = 64
A("s_nop 2")
A(f"v_add_f32 v{vSUM}, v{HA}, v{HA+1}")
A(f"v_add_f32 v{vSQ}, v{HA+2}, v{HA+3}")
A(f"v_mov_b32 v{HA+4}, v{vSUM}")
A(f"v_mov_b32 v{HA+5}, v{vSQ}")
A("s_nop 1")
A(f"v_permlane32_swap_b32 v{vSUM}, v{HA+4}")
A(f"v_permlane32_swap_b32 v{vSQ}, v{HA+5}")
A("s_nop 1")
A(f"v_add_f32 v{vSUM}, v{vSUM}, v{HA+4}")
A(f"v_add_f32 v{vSQ}, v{vSQ}, v{HA+5}")
INV = 0x3b124925
A(f"v_mul_f32 v{vSUM}, {INV:#x}, v{vSUM}")
A(f"v_mul_f32 v{vSQ}, {INV:#x}, v{vSQ}")
A(f"v_fma_f32 v{vSQ}, -v{vSUM}, v{vSUM}, v{vSQ}")
A(f"v_max_f32 v{vSQ}, 0, v{vSQ}")
A(f"v_cvt_pk_bf16_f32 v{vSQ}, v{vSQ}, v{vSQ}")
A(f"v_lshlrev_b32 v{vSQ}, 16, v{vSQ}")
A(f"v_add_f32 v{vSQ}, 0x3727c5ac, v{vSQ}")
A(f"v_cvt_pk_bf16_f32 v{vSQ}, v{vSQ}, v{vSQ}")
A(f"v_lshlrev_b32 v{vSQ}, 16, v{vSQ}")
A(f"v_sqrt_f32 v{vSQ}, v{vSQ}")
A("s_waitcnt vmcnt(0)")
EM(get_token("s"))
A(f"v_cvt_pk_bf16_f32 v{HG}, -v{vSUM}, -v{vSUM}")
A(f"v_cvt_pk_bf16_f32 v{HG+1}, -v{vSUM}, v{vSQ}")
A(f"v_mov_b32 v{HG+2}, 0")
A(f"v_mov_b32 v{HG+3}, v{vTOK}")
A(f"v_lshlrev_b32 v{TMP}, 4, v{TMP}")
A(f"s_lshl_b32 s24, s{sR}, 2")
A(f"s_add_u32 s24, s24, s{sWAVE}")
A("s_lshl_b32 s24, s24, 9")
A(f"s_add_u32 s24, s24, {WS_STAT}")
A(f"buffer_store_dwordx4 {v(HG,4)}, v{TMP}, {srd(SWS)}, s24 offen sc1")
A("s_endpgm")
LB("L_hcs")
A(f"v_lshlrev_b32 v{TMP}, 6, v{vr}")
A(f"v_lshl_add_u32 v{TMP}, v{vr}, 8, v{TMP}")
A(f"v_lshrrev_b32 v{TMP+1}, 1, v{vG}")
A(f"v_lshl_add_u32 v{TMP}, v{TMP+1}, 11, v{TMP}")
A(f"v_and_b32 v{TMP+1}, 1, v{vG}")
A(f"v_lshl_add_u32 v{TMP}, v{TMP+1}, 5, v{TMP}")
A(f"v_lshl_add_u32 v{TMP}, v{vq}, 3, v{TMP}")
A(f"v_add_u32 v{vRX}, s{sOA}, v{TMP}")
for ft in range(1, 4): A(f"v_xor_b32 v{vRX+ft}, {64*ft}, v{vRX}")
A(f"v_and_b32 v{TMP+2}, 127, v0")
A(f"s_lshl_b32 s24, s{sC}, 8")
A(f"v_lshl_add_u32 v{TMP+3}, v{TMP+2}, 1, s24")
A(f"global_load_ushort v{vDv}, v{TMP+3}, s[{pB1}:{pB1+1}]")
for c in range(7):
    A(f"s_waitcnt vmcnt({26-4*c})")
    if c == 4:
        for s in range(4): A(f"v_add_u32 v{vRX+s}, 65536, v{vRX+s}")
    for ft in range(4):
        A(f"ds_read_b64_tr_b16 {v(FA+4*ft,2)}, v{vRX+ft} offset:{16384*(c%4)}")
        A(f"ds_read_b64_tr_b16 {v(FA+4*ft+2,2)}, v{vRX+ft} offset:{16384*(c%4)+1024}")
    for ft in range(4):
        A(f"s_waitcnt lgkmcnt({6-2*ft})")
        for n in range(4):
            A(f"v_dot2c_f32_bf16 v{HA+ft}, s{sONES}, v{FA+4*ft+n}")
A(f"v_lshlrev_b32 v{TMP}, 2, v{vLANE}")
A(f"s_lshl_b32 s24, s{sWAVE}, 10")
A("s_add_u32 s24, s24, 131072")
A(f"v_add_u32 v{TMP}, s24, v{TMP}")
for ft in range(4): A(f"ds_write_b32 v{TMP}, v{HA+ft} offset:{256*ft}")
A(f"v_lshrrev_b32 v{TMP+1}, 5, v{TMP+2}")
A(f"v_and_b32 v{TMP+3}, 31, v{TMP+2}")
A(f"v_lshlrev_b32 v{TMP+3}, 2, v{TMP+3}")
A(f"v_lshl_add_u32 v{TMP+1}, v{TMP+1}, 8, v{TMP+3}")
A(f"v_add_u32 v{TMP+1}, 131072, v{TMP+1}")
A("s_waitcnt lgkmcnt(0)")
A("s_barrier")
for w in range(4):
    A(f"ds_read2_b32 {v(FA+2*w,2)}, v{TMP+1} offset0:0 offset1:32")
    if w < 3: A(f"v_add_u32 v{TMP+1}, 1024, v{TMP+1}")
A("s_waitcnt vmcnt(0) lgkmcnt(0)")
EM(get_token("c"))
for i in range(1, 8): A(f"v_add_f32 v{FA}, v{FA}, v{FA+i}")
vCS = FA
A(f"v_cvt_pk_bf16_f32 v{HG}, v{vCS}, v{vCS}")
A(f"v_lshlrev_b32 v{TMP}, 16, v{HG}")
A(f"v_sub_f32 v{TMP}, v{vCS}, v{TMP}")
A(f"v_cvt_pk_bf16_f32 v{HG}, v{vCS}, v{TMP}")
A(f"v_and_b32 v{TMP+1}, s{sMASK}, v{HG}")
A(f"v_sub_f32 v{TMP}, v{TMP}, v{TMP+1}")
A(f"v_lshlrev_b32 v{TMP+1}, 16, v{vDv}")
A(f"v_cvt_pk_bf16_f32 v{HG+1}, v{TMP}, v{TMP+1}")
A(f"v_mov_b32 v{HG+2}, 0")
A(f"v_mov_b32 v{HG+3}, v{vTOK}")
A(f"v_lshlrev_b32 v{TMP}, 4, v{TMP+2}")
A(f"s_lshl_b32 s24, s{sC}, 11")
A(f"s_add_u32 s24, s24, {WS_CS}")
A(f"buffer_store_dwordx4 {v(HG,4)}, v{TMP}, {srd(SWS)}, s24 offen sc1")
A("s_endpgm")

L.append(f""".fill 4096, 4, 0xbf800000
.section .rodata,"a"
.p2align 6
.amdhsa_kernel {KNAME}
  .amdhsa_next_free_vgpr 512
  .amdhsa_next_free_sgpr 102
  .amdhsa_accum_offset 256
  .amdhsa_group_segment_fixed_size 0
  .amdhsa_kernarg_size 112
  .amdhsa_user_sgpr_count 2
  .amdhsa_user_sgpr_kernarg_segment_ptr 1
  .amdhsa_system_sgpr_workgroup_id_x 1
.end_amdhsa_kernel
""")
open(sys.argv[1], "w").write("\n".join(L))
```
